```python
import torch

def _softmax(x, axis=-1):
    return torch.softmax(x, dim=axis)

def _gelu(x):
    return torch.nn.functional.gelu(x, approximate='tanh')

def _silu(x):
    return torch.nn.functional.silu(x)

def _sigmoid(x):
    return torch.sigmoid(x)

def _layernorm(x, axis=-1, eps=1e-05):
    m = x.mean(dim=axis, keepdim=True)
    v = x.var(dim=axis, keepdim=True, unbiased=False)
    return (x - m) / torch.sqrt(v + eps)

def _scatter_add(tgt, idx, src, axis=0):
    return tgt.clone().index_add_(axis, idx, src)

def _segment_sum(src, seg, n):
    out = torch.zeros((n,) + src.shape[1:], dtype=src.dtype)
    return out.index_add_(0, seg, src)

def _pad(x, pw):
    flat = tuple((v for pair in reversed(pw) for v in pair))
    return torch.nn.functional.pad(x, flat)
kernel_name = 'interleave_layers__memory_aug_recurrent_mem_tr__linear_attn_block__prompt'

def setup_inputs():

    _w = lambda a: (lambda t: t.to(torch.bfloat16) if t.is_floating_point() else t)(torch.as_tensor(a))

    def _A_setup():
        B, S, Dm = (1, 2048, 512)
        H, Dh = (32, 128)
        M, seg = (8, 32)
        seg = min(seg, S)
        S = S // seg * seg
        return {'x': _w((lambda *s: torch.randn(*s, dtype=torch.bfloat16) * 0.05)(B, S, Dm)), 'mem0': _w((lambda *s: torch.randn(*s, dtype=torch.bfloat16) * 0.2)(B, M, Dm)), 'Wq': _w((lambda *s: torch.randn(*s, dtype=torch.bfloat16) * 1.6)(Dm, H, Dh) * Dm ** (-0.5)), 'Wk': _w((lambda *s: torch.randn(*s, dtype=torch.bfloat16) * 1.6)(Dm, H, Dh) * Dm ** (-0.5)), 'Wv': _w((lambda *s: torch.randn(*s, dtype=torch.bfloat16) * 0.2)(Dm, H, Dh) * Dm ** (-0.5)), 'Wo': _w((lambda *s: torch.randn(*s, dtype=torch.bfloat16) * 0.2)(H, Dh, Dm) * (H * Dh) ** (-0.5)), 'seg_len': seg}
    _A_in = _A_setup()

    def _B_setup():
        B, S, D = (1, 2048, 512)
        return {'x': _w((lambda *s: torch.randn(*s, dtype=torch.bfloat16) * 0.05)(B, S, D)), 'wqkv': _w((lambda *s: torch.randn(*s, dtype=torch.bfloat16) * 0.1)(D, 3 * D)), 'wo': _w((lambda *s: torch.randn(*s, dtype=torch.bfloat16) * 0.05)(D, D))}
    _B_in = _B_setup()
    return {'A_x': _A_in['x'], 'A_mem0': _A_in['mem0'], 'A_Wq': _A_in['Wq'], 'A_Wk': _A_in['Wk'], 'A_Wv': _A_in['Wv'], 'A_Wo': _A_in['Wo'], 'A_seg_len': _A_in['seg_len'], 'B_x': _B_in['x'], 'B_wqkv': _B_in['wqkv'], 'B_wo': _B_in['wo']}

def reference(A_x, A_mem0, A_Wq, A_Wk, A_Wv, A_Wo, A_seg_len, B_x, B_wqkv, B_wo):

    def _A_ref(x, mem0, Wq, Wk, Wv, Wo, seg_len):
        B, S, Dm = x.shape
        H, Dh = (Wq.shape[1], Wq.shape[2])
        M = mem0.shape[1]
        scale = Dh ** (-0.5)
        n_seg = S // seg_len
        L = M + seg_len
        idx = torch.arange(L)
        mask = (idx[:, None] < M) | (idx[:, None] >= idx[None, :])
        mem = mem0
        outs = []
        for s in range(n_seg):
            xs = x[:, s * seg_len:(s + 1) * seg_len, :].clone()
            h = torch.concatenate([mem, xs], axis=1)
            q = torch.einsum('btd,dhe->bhte', h, Wq)
            k = torch.einsum('btd,dhe->bhte', h, Wk)
            v = torch.einsum('btd,dhe->bhte', h, Wv)
            scores = torch.einsum('bhqe,bhke->bhqk', q, k) * scale
            scores = torch.where(mask[None, None], scores, -1000000000.0)
            p = _softmax(scores, axis=-1)
            o = torch.einsum('bhqk,bhke->bhqe', p, v)
            o = torch.einsum('bhte,hed->btd', o, Wo)
            mem = o[:, :M, :].clone()
            outs.append(o[:, M:, :])
        return torch.concatenate(outs, axis=1)

    def _B_ref(x, wqkv, wo):
        B, S, D = x.shape
        H = 32
        Dh = D // H
        qkv = (lambda x, *d: x.permute(*d))((x @ wqkv).reshape(B, S, 3, H, Dh), 2, 0, 3, 1, 4)
        q, k, v = (qkv[0], qkv[1], qkv[2])
        phi = lambda t: torch.where(t > 0, t + 1, torch.exp(t)) + 1e-06
        pq, pk = (phi(q), phi(k))
        kv = torch.einsum('bhsd,bhse->bhde', pk, v)
        z = torch.einsum('bhsd->bhd', pk)
        num = torch.einsum('bhqd,bhde->bhqe', pq, kv)
        den = torch.einsum('bhqd,bhd->bhq', pq, z)[..., None] + 1e-06
        o = num / den
        return (lambda x, *d: x.permute(*d))(o, 0, 2, 1, 3).reshape(B, S, D) @ wo
    x = A_x
    x = x + _A_ref(_layernorm(x, axis=-1), A_mem0, A_Wq, A_Wk, A_Wv, A_Wo, A_seg_len)
    x = x + _B_ref(_layernorm(x, axis=-1), B_wqkv, B_wo)
    x = x + _A_ref(_layernorm(x, axis=-1), A_mem0, A_Wq, A_Wk, A_Wv, A_Wo, A_seg_len)
    x = x + _B_ref(_layernorm(x, axis=-1), B_wqkv, B_wo)
    return x
```

```python
S_, D_, H_, DH_, M_, SEG_, NSEG_ = 2048, 512, 32, 128, 8, 32, 64

KA_X, KA_MEM0, KA_WQ, KA_WK, KA_WV, KA_WO, KA_SEG, KA_BX, KA_BWQKV, KA_BWO, KA_OUT, KA_DBG, KA_WS = [8*i for i in range(13)]

WQKV_F = 0x0000000
WO_F   = 0x0C00000
BQKV_F = 0x1000000
BWO_F  = 0x1180000
XN_F   = 0x1200000
Q_F    = 0x1400000
K_F    = 0x2400000
V_F    = 0x3400000
KM_F   = 0x4400000
VM_F   = 0x4C00000
O_F    = 0x5400000
PART   = 0x6400000
X1     = 0x7400000
X2     = 0x7600000
X3     = 0x7800000
PRING  = 0x7A00000
MRING  = 0x7B00000
PQ_F   = 0x7C00000
KVP    = 0x7E00000
KVF    = 0x8000000
WQKVS_F = 0x8800000
FLG = 0x7B08000
STAMPS = 0xA000000

class Kern:
    def __init__(self, name, vgpr=128, sgpr=96, accum=None, lds=0):
        self.name = name
        self.lines = []
        self.vgpr = vgpr
        self.sgpr = sgpr
        self.accum = accum
        self.lab = 0
    def __call__(self, s):
        for l in s.strip("\n").split("\n"):
            l = l.strip()
            if l:
                self.lines.append("    " + l)
    def label(self, l):
        self.lines.append(f"{l}:")
    def newlab(self, base="L"):
        self.lab += 1
        return f"{base}_{self.name}_{self.lab}"
    def text(self):
        hdr = f".globl {self.name}\n.p2align 8\n.type {self.name},@function\n{self.name}:\n"
        return hdr + "\n".join(self.lines) + "\n"
    def desc(self):
        acc = self.accum if self.accum is not None else ((self.vgpr + 3)//4)*4
        return f""".p2align 6
.amdhsa_kernel {self.name}
  .amdhsa_next_free_vgpr {self.vgpr}
  .amdhsa_next_free_sgpr {self.sgpr}
  .amdhsa_accum_offset {acc}
  .amdhsa_group_segment_fixed_size 0
  .amdhsa_kernarg_size 104
  .amdhsa_user_sgpr_count 2
  .amdhsa_user_sgpr_kernarg_segment_ptr 1
  .amdhsa_system_sgpr_workgroup_id_x 1
.end_amdhsa_kernel
"""

def vr(b, n=1):
    return f"v{b}" if n == 1 else f"v[{b}:{b+n-1}]"
def ar(b, n=1):
    return f"a{b}" if n == 1 else f"a[{b}:{b+n-1}]"
def sr(b, n=1):
    return f"s{b}" if n == 1 else f"s[{b}:{b+n-1}]"
```

```python
from common import *
from k_ln import xlane_sum_g, xlane_max_g
from k_chain import SCALE, LOG2E

def gen_ta():
    k = Kern("ta_kernel", vgpr=200, sgpr=40)
    Lend = k.newlab()
    k(f"""
    s_cmp_ge_u32 s2, 512
    s_cbranch_scc1 {Lend}
    s_load_dwordx2 s[4:5], s[0:1], {KA_WS}
    v_and_b32 v1, 63, v0
    v_lshrrev_b32 v4, 6, v0
    v_bfe_u32 v2, v0, 4, 2
    v_and_b32 v3, 15, v0
    v_lshlrev_b32 v5, 4, v1
    s_nop 0
    v_readfirstlane_b32 s12, v4
    s_lshl_b32 s13, s2, 2
    s_add_u32 s13, s13, s12
    s_lshl_b32 s14, s13, 13            ; *8192
    s_lshl_b32 s15, s13, 12            ; *4096
    v_add_u32 v6, s14, v5
    v_add_u32 v7, {Q_F}, v6
    v_add_u32 v8, 4096, v7
    v_add_u32 v9, {K_F}, v6
    v_add_u32 v10, 4096, v9
    v_add_u32 v11, {V_F}, v6
    v_add_u32 v12, 4096, v11
    v_add_u32 v13, s15, v5
    v_add_u32 v13, {KM_F}, v13
    v_lshrrev_b32 v14, 1, v5
    v_add_u32 v14, s15, v14
    v_add_u32 v14, {VM_F}, v14
    s_waitcnt lgkmcnt(0)
    """)
    for tt in range(2):
        for w in range(4):
            k(f"global_load_dwordx4 v[{16+(tt*4+w)*4}:{19+(tt*4+w)*4}], v{7+tt}, s[4:5] offset:{w*1024}")
    for w in range(4):
        k(f"global_load_dwordx4 v[{80+w*4}:{83+w*4}], v13, s[4:5] offset:{w*1024}")
    for tt in range(2):
        for w in range(4):
            k(f"global_load_dwordx4 v[{48+(tt*4+w)*4}:{51+(tt*4+w)*4}], v{9+tt}, s[4:5] offset:{w*1024}")
    for et in range(8):
        k(f"global_load_dwordx4 v[{96+et*4}:{99+et*4}], v{11+et//4}, s[4:5] offset:{(et%4)*1024}")
    for et in range(8):
        k(f"global_load_dwordx2 v[{128+et*2}:{129+et*2}], v14, s[4:5] offset:{et*512}")
    k("s_waitcnt vmcnt(16)")
    for tq in range(2):
        b = 144 + tq*12
        for w in range(4):
            c = "0" if w == 0 else f"v[{b}:{b+3}]"
            k(f"v_mfma_f32_16x16x32_bf16 v[{b}:{b+3}], v[{80+w*4}:{83+w*4}], v[{16+(tq*4+w)*4}:{19+(tq*4+w)*4}], {c}")
        for tk in range(tq+1):
            bb = b + 4 + 4*tk
            for w in range(4):
                c = "0" if w == 0 else f"v[{bb}:{bb+3}]"
                k(f"v_mfma_f32_16x16x32_bf16 v[{bb}:{bb+3}], v[{48+(tk*4+w)*4}:{51+(tk*4+w)*4}], v[{16+(tq*4+w)*4}:{19+(tq*4+w)*4}], {c}")
    k(f"""
    v_lshlrev_b32 v15, 2, v2
    s_mov_b32 s32, 0
    s_mov_b32 s33, -1
    """)
    for r in range(4):
        k(f"v_add_u32 v6, {r}, v15\nv_cmp_gt_u32 s[{20+2*r}:{21+2*r}], v6, v3")
    k(f"s_mov_b32 s30, {SCALE}\ns_mov_b32 s31, {LOG2E}\nv_mov_b32 v15, 0xff800000\ns_nop 4")
    for tq in range(2):
        b = 144 + tq*12
        n = 8 + 4*tq
        for i in range(0, n, 2):
            a, bb = b+i, b+i+1
            k(f"""
            v_cvt_pk_bf16_f32 v6, v{a}, v{bb}
            v_lshlrev_b32 v{a}, 16, v6
            v_and_b32 v{bb}, 0xffff0000, v6
            v_mul_f32 v{a}, s30, v{a}
            v_mul_f32 v{bb}, s30, v{bb}
            v_cvt_pk_bf16_f32 v6, v{a}, v{bb}
            v_lshlrev_b32 v{a}, 16, v6
            v_and_b32 v{bb}, 0xffff0000, v6
            """)
        for r in range(4):
            k(f"v_cndmask_b32 v{b+r}, v{b+r}, v15, s[32:33]")
            d = b + 4 + 4*tq + r
            k(f"v_cndmask_b32 v{d}, v{d}, v15, s[{20+2*r}:{21+2*r}]")
        k(f"v_max_f32 v6, v{b}, v{b+1}")
        for i in range(2, n, 2):
            k(f"v_max3_f32 v6, v6, v{b+i}, v{b+i+1}")
        xlane_max_g(k, 6, 7, 8)
        for i in range(n):
            k(f"v_sub_f32 v{b+i}, v{b+i}, v6\nv_mul_f32 v{b+i}, s31, v{b+i}\nv_exp_f32 v{b+i}, v{b+i}")
        k(f"s_nop 0\nv_add_f32 v6, v{b}, v{b+1}")
        for i in range(2, n):
            k(f"v_add_f32 v6, v6, v{b+i}")
        xlane_sum_g(k, 6, 7, 8)
        k("v_rcp_f32 v6, v6\ns_nop 0")
        for i in range(n):
            k(f"v_mul_f32 v{b+i}, v{b+i}, v6")
        p = 168 + tq*8
        k(f"v_cvt_pk_bf16_f32 v{p}, v{b}, v{b+1}\nv_cvt_pk_bf16_f32 v{p+1}, v{b+2}, v{b+3}")
        k(f"v_cvt_pk_bf16_f32 v{p+4}, v{b+4}, v{b+5}\nv_cvt_pk_bf16_f32 v{p+5}, v{b+6}, v{b+7}")
        if tq == 1:
            k(f"v_cvt_pk_bf16_f32 v{p+6}, v{b+8}, v{b+9}\nv_cvt_pk_bf16_f32 v{p+7}, v{b+10}, v{b+11}")
        else:
            k(f"v_mov_b32 v{p+6}, 0\nv_mov_b32 v{p+7}, 0")
    k("s_waitcnt vmcnt(0)\ns_nop 1")
    for tq in range(2):
        p = 168 + tq*8
        for et in range(8):
            d = 16 + (tq*8+et)*4
            k(f"v_mfma_f32_16x16x32_bf16 v[{d}:{d+3}], v[{96+et*4}:{99+et*4}], v[{p+4}:{p+7}], 0")
        for et in range(8):
            d = 16 + (tq*8+et)*4
            k(f"v_mfma_f32_16x16x16_bf16 v[{d}:{d+3}], v[{128+et*2}:{129+et*2}], v[{p}:{p+1}], v[{d}:{d+3}]")
    k(f"""
    s_lshr_b32 s16, s13, 5             ; seg
    s_and_b32 s17, s13, 31             ; h
    s_lshl_b32 s16, s16, 18            ; 2seg*128KB
    s_lshl_b32 s17, s17, 12
    s_add_u32 s16, s16, s17
    s_add_u32 s16, s16, {O_F}
    v_add_u32 v6, s16, v5
    v_add_u32 v7, 131072, v6
    s_nop 7
    """)
    for tq in range(2):
        for w in range(4):
            d0 = 16 + (tq*8+2*w)*4; d1 = d0+4
            t = 144 + 4*((tq*4+w) % 4)
            k(f"""
            v_cvt_pk_bf16_f32 v{t}, v{d0}, v{d0+1}
            v_cvt_pk_bf16_f32 v{t+1}, v{d0+2}, v{d0+3}
            v_cvt_pk_bf16_f32 v{t+2}, v{d1}, v{d1+1}
            v_cvt_pk_bf16_f32 v{t+3}, v{d1+2}, v{d1+3}
            global_store_dwordx4 v{6+tq}, v[{t}:{t+3}], s[4:5] offset:{w*1024}
            """)
    k.label(Lend)
    k("s_endpgm")
    return k, "grid=(512,1,1) block=(256,1,1) lds=0"
```

```python
from common import *
from k_gemm import gemm_setup, gemm_core
from k_ln import rnd_pair, rnd1, xlane_sum_g
from k_chain import LOG2E

def phi_pair(k, a, b):
    rnd_pair(k, a, b, 11)
    for x in (a, b):
        k(f"""
        v_mul_f32 v12, s30, v{x}
        v_exp_f32 v12, v12
        v_add_f32 v13, 1.0, v{x}
        v_cmp_lt_f32 vcc, 0, v{x}
        s_nop 1
        v_cndmask_b32 v{x}, v12, v13, vcc
        """)
    rnd_pair(k, a, b, 11)
    k(f"v_add_f32 v{a}, 0x358637bd, v{a}\nv_add_f32 v{b}, 0x358637bd, v{b}")
    rnd_pair(k, a, b, 11)

def gen_g3():
    k = Kern("g3_kernel", vgpr=168, sgpr=40)
    Lend, Lkv = k.newlab(), k.newlab()
    k(f"s_cmp_ge_u32 s2, 192\ns_cbranch_scc1 {Lend}")
    gemm_setup(k)
    k(f"""
    s_mov_b32 s30, {LOG2E}
    s_and_b32 s20, s2, 15              ; tb
    s_lshl_b32 s24, s20, 17
    s_add_u32 s24, s24, {XN_F}
    s_cmp_ge_u32 s2, 64
    s_cbranch_scc1 {Lkv}
    s_lshr_b32 s21, s2, 4              ; cb
    s_lshl_b32 s25, s21, 17
    s_add_u32 s25, s25, {BQKV_F}
    """)
    gemm_core(k, 16, 2, 24, 16384, 25, 16384)
    k(f"""
    s_lshr_b32 s27, s12, 1
    s_and_b32 s28, s12, 1
    s_lshl_b32 s29, s20, 3
    s_lshl_b32 s31, s27, 2
    s_add_u32 s29, s29, s31
    s_lshl_b32 s29, s29, 4
    s_lshl_b32 s31, s21, 2
    s_add_u32 s29, s29, s31
    s_lshl_b32 s31, s28, 1
    s_add_u32 s29, s29, s31
    s_lshl_b32 s29, s29, 10
    s_add_u32 s29, s29, {PQ_F}
    v_lshlrev_b32 v4, 4, v1
    v_add_u32 v4, s29, v4
    """)
    for a in range(4):
        for p in range(2):
            d0 = 64 + (a*4+2*p)*4
            for i in range(0, 8, 2):
                phi_pair(k, d0+i, d0+i+1)
            t = 32 + 4*((a*2+p) % 4)
            for i in range(4):
                k(f"v_cvt_pk_bf16_f32 v{t+i}, v{d0+2*i}, v{d0+2*i+1}")
            k(f"global_store_dwordx4 v4, v[{t}:{t+3}], s[4:5] offset:{p*1024}")
        if a < 3:
            k("v_add_u32 v4, 16384, v4")
    k(f"s_branch {Lend}")
    k.label(Lkv)
    k(f"""
    s_sub_u32 s21, s2, 64
    s_lshr_b32 s21, s21, 4             ; hb
    s_lshl_b32 s25, s21, 16
    s_add_u32 s25, s25, {BQKV_F + 32*16384}
    """)
    gemm_core(k, 16, 1, 24, 16384, 25, 16384, relB=[0, 16384, 32*16384, 33*16384], halfB=2*16384)
    k("v_mov_b32 v16, 0x3f803f80\nv_mov_b32 v17, 0x3f803f80\nv_mov_b32 v18, 0x3f803f80\nv_mov_b32 v19, 0x3f803f80")
    for a in range(4):
        for b in range(2):
            d0 = 64 + (a*4+b)*4
            phi_pair(k, d0, d0+1)
            phi_pair(k, d0+2, d0+3)
    for hh in range(2):
        for ap in range(2):
            for half in range(2):
                a = 2*ap + half
                d = 64 + (a*4+hh)*4
                t = 32 + (hh*2+ap)*4 + 2*half
                k(f"v_cvt_pk_bf16_f32 v{t}, v{d}, v{d+1}\nv_cvt_pk_bf16_f32 v{t+1}, v{d+2}, v{d+3}")
                d = 64 + (a*4+2+hh)*4
                t = 48 + (hh*2+ap)*4 + 2*half
                k(f"v_cvt_pk_bf16_f32 v{t}, v{d}, v{d+1}\nv_cvt_pk_bf16_f32 v{t+1}, v{d+2}, v{d+3}")
    k("s_nop 1")
    for hh in range(2):
        dk = 64 + hh*8; dz = dk + 4
        for ap in range(2):
            A = f"v[{32+(hh*2+ap)*4}:{35+(hh*2+ap)*4}]"
            B = f"v[{48+(hh*2+ap)*4}:{51+(hh*2+ap)*4}]"
            c = "0" if ap == 0 else f"v[{dk}:{dk+3}]"
            k(f"v_mfma_f32_16x16x32_bf16 v[{dk}:{dk+3}], {A}, {B}, {c}")
            c = "0" if ap == 0 else f"v[{dz}:{dz+3}]"
            k(f"v_mfma_f32_16x16x32_bf16 v[{dz}:{dz+3}], {A}, v[16:19], {c}")
    k(f"""
    s_lshr_b32 s27, s12, 1
    s_and_b32 s28, s12, 1
    s_lshl_b32 s29, s20, 1
    s_add_u32 s29, s29, s27
    s_lshl_b32 s29, s29, 5
    s_lshl_b32 s31, s21, 2
    s_add_u32 s29, s29, s31
    s_lshl_b32 s31, s28, 1
    s_add_u32 s29, s29, s31
    s_lshl_b32 s29, s29, 11
    s_add_u32 s29, s29, {KVP}
    v_lshlrev_b32 v4, 4, v1
    v_add_u32 v4, s29, v4
    s_nop 7
    """)
    for i in range(4):
        k(f"global_store_dwordx4 v4, v[{64+4*i}:{67+4*i}], s[4:5] offset:{i*1024}")
    k.label(Lend)
    k("s_endpgm")
    return k, "grid=(192,1,1) block=(256,1,1) lds=65536"

def gen_kvred():
    k = Kern("kvred_kernel", vgpr=144, sgpr=16)
    Lend = k.newlab()
    k(f"""
    s_cmp_ge_u32 s2, 64
    s_cbranch_scc1 {Lend}
    s_load_dwordx2 s[4:5], s[0:1], {KA_WS}
    s_lshl_b32 s6, s2, 10
    v_lshlrev_b32 v1, 4, v0
    v_add_u32 v1, s6, v1
    v_add_u32 v1, {KVP}, v1
    s_waitcnt lgkmcnt(0)
    """)
    for i in range(32):
        k(f"global_load_dwordx4 v[{8+4*i}:{11+4*i}], v1, s[4:5]")
        if i < 31: k("v_add_u32 v1, 65536, v1")
    k("s_waitcnt vmcnt(0)")
    for st_ in (16, 8, 4, 2, 1):
        for i in range(st_):
            a = 8+4*i; b = 8+4*(i+st_)
            k(f"v_pk_add_f32 v[{a}:{a+1}], v[{a}:{a+1}], v[{b}:{b+1}]")
            k(f"v_pk_add_f32 v[{a+2}:{a+3}], v[{a+2}:{a+3}], v[{b+2}:{b+3}]")
    k(f"""
    v_cvt_pk_bf16_f32 v2, v8, v9
    v_cvt_pk_bf16_f32 v3, v10, v11
    s_lshl_b32 s6, s2, 9
    v_lshlrev_b32 v1, 3, v0
    v_add_u32 v1, s6, v1
    v_add_u32 v1, {KVF}, v1
    global_store_dwordx2 v1, v[2:3], s[4:5]
    """)
    k.label(Lend)
    k("s_endpgm")
    return k, "grid=(64,1,1) block=(64,1,1) lds=0"

def gen_b2(name, xin_ws, xout_ws, do_ln):
    k = Kern(name, vgpr=200, sgpr=40)
    Lend = k.newlab()
    k(f"""
    s_cmp_ge_u32 s2, 128
    s_cbranch_scc1 {Lend}
    s_load_dwordx2 s[4:5], s[0:1], {KA_WS}
    s_load_dwordx2 s[6:7], s[0:1], {KA_OUT}
    v_and_b32 v1, 63, v0
    v_lshrrev_b32 v4, 6, v0
    v_bfe_u32 v2, v0, 4, 2
    v_and_b32 v3, 15, v0
    v_lshlrev_b32 v5, 4, v1
    s_nop 0
    v_readfirstlane_b32 s12, v4
    s_lshl_b32 s13, s2, 14             ; tt*16KB
    s_lshl_b32 s14, s12, 12            ; 4w * 1KB
    s_add_u32 s13, s13, s14
    v_add_u32 v6, s13, v5
    v_add_u32 v6, {PQ_F}, v6
    s_lshl_b32 s14, s12, 13
    v_lshrrev_b32 v7, 1, v5
    v_add_u32 v7, s14, v7
    v_add_u32 v7, {KVF}, v7
    v_add_u32 v8, 4096, v7
    s_waitcnt lgkmcnt(0)
    """)
    if xout_ws is not None:
        k(f"s_add_u32 s6, s4, {xout_ws}\ns_addc_u32 s7, s5, 0")
    for q in range(4):
        k(f"global_load_dwordx4 v[{16+4*q}:{19+4*q}], v6, s[4:5] offset:{q*1024}")
    for hh in range(8):
        k(f"global_load_dwordx2 v[{32+4*hh}:{33+4*hh}], v{7+hh//4}, s[4:5] offset:{(hh%4)*1024}")
        k(f"global_load_dwordx2 v[{34+4*hh}:{35+4*hh}], v{7+hh//4}, s[4:5] offset:{(hh%4)*1024+512}")
    k(f"""
    s_lshl_b32 s14, s12, 17
    v_add_u32 v9, s14, v5
    v_add_u32 v9, {BWO_F}, v9
    """)
    def wload(kk):
        base = 128 + (kk % 2)*32
        for dtl in range(8):
            k(f"v_add_u32 v10, {dtl*16384 + kk*1024}, v9")
            k(f"global_load_dwordx4 v[{base+4*dtl}:{base+4*dtl+3}], v10, s[4:5]")
    k("s_waitcnt vmcnt(0)")
    wload(0)
    for hh in range(8):
        B = f"v[{16+4*(hh//2)+2*(hh%2)}:{17+4*(hh//2)+2*(hh%2)}]"
        k(f"v_mfma_f32_16x16x16_bf16 v[{64+8*hh}:{67+8*hh}], v[{32+4*hh}:{33+4*hh}], {B}, 0")
        k(f"v_mfma_f32_16x16x16_bf16 v[{68+8*hh}:{71+8*hh}], v[{34+4*hh}:{35+4*hh}], {B}, 0")
    k("s_nop 7")
    for hh in range(8):
        n = 64+8*hh; d = 68+8*hh
        rnd_pair(k, n, n+1, 11); rnd_pair(k, n+2, n+3, 11)
        rnd1(k, d, 11)
        k(f"v_add_f32 v{d}, 0x358637bd, v{d}")
        rnd1(k, d, 11)
        k(f"v_rcp_f32 v12, v{d}\ns_nop 0")
        for i in range(4):
            k(f"""
            v_mul_f32 v13, v{n+i}, v12
            v_fma_f32 v14, -v13, v{d}, v{n+i}
            v_fma_f32 v{n+i}, v14, v12, v13
            """)
        t = 16 + 4*(hh//2) + 2*(hh%2)
        k(f"v_cvt_pk_bf16_f32 v{t}, v{n}, v{n+1}\nv_cvt_pk_bf16_f32 v{t+1}, v{n+2}, v{n+3}")
    k(f"""
    s_lshl_b32 s14, s12, 12
    v_add_u32 v10, s14, v5
    """)
    for q in range(4):
        k(f"ds_write_b128 v10, v[{16+4*q}:{19+4*q}] offset:{q*1024}")
    k("s_waitcnt lgkmcnt(0)\ns_barrier")
    for kk in range(16):
        k(f"ds_read_b128 v[{64+4*kk}:{67+4*kk}], v5 offset:{kk*1024}")
    for kk in range(16):
        if kk + 1 < 16:
            wload(kk+1)
            k("s_waitcnt vmcnt(8) lgkmcnt(0)")
        else:
            k("s_waitcnt vmcnt(0)")
        base = 128 + (kk % 2)*32
        for dtl in range(8):
            d = 16 + 4*dtl
            c = "0" if kk == 0 else f"v[{d}:{d+3}]"
            k(f"v_mfma_f32_16x16x32_bf16 v[{d}:{d+3}], v[{base+4*dtl}:{base+4*dtl+3}], v[{64+4*kk}:{67+4*kk}], {c}")
    k(f"""
    s_lshl_b32 s13, s2, 4
    v_add_u32 v6, s13, v3
    v_lshlrev_b32 v6, 10, v6
    s_lshl_b32 s14, s12, 8
    v_add_u32 v6, s14, v6
    v_lshl_add_u32 v6, v2, 3, v6
    v_add_u32 v7, {xin_ws}, v6
    """)
    for dtl in range(8):
        k(f"global_load_dwordx2 v[{48+2*dtl}:{49+2*dtl}], v7, s[4:5] offset:{dtl*32}")
    k("s_waitcnt vmcnt(0)")
    for dtl in range(8):
        d = 16+4*dtl; x = 48+2*dtl
        rnd_pair(k, d, d+1, 11); rnd_pair(k, d+2, d+3, 11)
        k(f"""
        v_lshlrev_b32 v12, 16, v{x}
        v_and_b32 v13, 0xffff0000, v{x}
        v_lshlrev_b32 v14, 16, v{x+1}
        v_and_b32 v15, 0xffff0000, v{x+1}
        v_add_f32 v{d}, v{d}, v12
        v_add_f32 v{d+1}, v{d+1}, v13
        v_add_f32 v{d+2}, v{d+2}, v14
        v_add_f32 v{d+3}, v{d+3}, v15
        v_cvt_pk_bf16_f32 v{x}, v{d}, v{d+1}
        v_cvt_pk_bf16_f32 v{x+1}, v{d+2}, v{d+3}
        global_store_dwordx2 v6, v[{x}:{x+1}], s[6:7] offset:{dtl*32}
        """)
        if do_ln:
            k(f"""
            v_lshlrev_b32 v{d}, 16, v{x}
            v_and_b32 v{d+1}, 0xffff0000, v{x}
            v_lshlrev_b32 v{d+2}, 16, v{x+1}
            v_and_b32 v{d+3}, 0xffff0000, v{x+1}
            """)
    if do_ln:
        k("v_add_f32 v8, v16, v17")
        for j in range(2, 32):
            k(f"v_add_f32 v8, v8, v{16+j}")
        xlane_sum_g(k, 8, 9, 10)
        LB = 16384
        k(f"""
        v_lshlrev_b32 v11, 2, v3
        v_add_u32 v11, {LB}, v11
        s_lshl_b32 s14, s12, 6
        v_add_u32 v12, s14, v11
        ds_write_b32 v12, v8
        s_waitcnt lgkmcnt(0)
        s_barrier
        ds_read_b32 v8, v11
        ds_read_b32 v9, v11 offset:64
        ds_read_b32 v10, v11 offset:128
        ds_read_b32 v13, v11 offset:192
        s_waitcnt lgkmcnt(0)
        v_add_f32 v8, v8, v9
        v_add_f32 v10, v10, v13
        v_add_f32 v8, v8, v10
        v_mul_f32 v8, 0x3b000000, v8
        v_mov_b32 v14, 0
        """)
        for j in range(32):
            k(f"v_sub_f32 v9, v{16+j}, v8\nv_fmac_f32 v14, v9, v9")
        xlane_sum_g(k, 14, 9, 10)
        k(f"""
        ds_write_b32 v12, v14 offset:256
        s_waitcnt lgkmcnt(0)
        s_barrier
        ds_read_b32 v14, v11 offset:256
        ds_read_b32 v9, v11 offset:320
        ds_read_b32 v10, v11 offset:384
        ds_read_b32 v13, v11 offset:448
        s_waitcnt lgkmcnt(0)
        v_add_f32 v14, v14, v9
        v_add_f32 v10, v10, v13
        v_add_f32 v14, v14, v10
        v_mul_f32 v14, 0x3b000000, v14
        """)
        rnd_pair(k, 8, 14, 9)
        k("v_add_f32 v14, 0x3727c5ac, v14")
        rnd1(k, 14, 9)
        k("v_sqrt_f32 v14, v14\ns_nop 0")
        rnd1(k, 14, 9)
        k("v_rcp_f32 v15, v14\ns_nop 0")
        k(f"""
        s_lshl_b32 s13, s2, 14
        s_lshl_b32 s14, s12, 12
        s_add_u32 s13, s13, s14
        s_add_u32 s13, s13, {XN_F}
        v_lshrrev_b32 v6, 1, v2
        v_lshlrev_b32 v6, 8, v6            ; (g>>1)*256
        v_lshl_add_u32 v6, v3, 4, v6
        v_and_b32 v7, 1, v2
        v_lshl_add_u32 v6, v7, 3, v6
        v_add_u32 v6, s13, v6
        """)
        for dtl in range(8):
            d = 16+4*dtl; x = 64+2*dtl
            for i in range(0, 4, 2):
                a, b = d+i, d+i+1
                k(f"v_sub_f32 v{a}, v{a}, v8\nv_sub_f32 v{b}, v{b}, v8")
                rnd_pair(k, a, b, 9)
                for xx in (a, b):
                    k(f"""
                    v_mul_f32 v9, v{xx}, v15
                    v_fma_f32 v10, -v9, v14, v{xx}
                    v_fma_f32 v{xx}, v10, v15, v9
                    """)
            k(f"""
            v_cvt_pk_bf16_f32 v{x}, v{d}, v{d+1}
            v_cvt_pk_bf16_f32 v{x+1}, v{d+2}, v{d+3}
            global_store_dwordx2 v6, v[{x}:{x+1}], s[4:5] offset:{(dtl>>1)*1024 + (dtl&1)*512}
            """)
    k.label(Lend)
    k("s_endpgm")
    return k, "grid=(128,1,1) block=(256,1,1) lds=17408"
```

```python
from common import *
from k_ln import xlane_sum_g, xlane_max_g

LDS_SX = 0
LDS_OX = LDS_SX + 12288
LDS_ROLE = LDS_OX + 4096
LDS_WO = 17408
LDS_CHAIN = LDS_WO + 131072

def wreg(jj, kk):
    R = (jj*16 + kk)*4
    if R < 256:
        return f"a[{R}:{R+3}]"
    R = 128 + R - 256
    return f"v[{R}:{R+3}]"

SCALE = 0x3db504f3
LOG2E = 0x3fb8aa3b

def chain_loop(k, fast):
    st = "" if fast else " sc1"
    Lloop = k.newlab("loop"); Ldone = k.newlab("done"); Lnored = k.newlab("nored"); Ldead = k.newlab("dead")
    retry = []
    k.label(Lloop)
    for kk in range(16):
        k(f"global_load_dwordx4 v[{64+4*kk}:{67+4*kk}], v4, s[20:21] offset:{kk*64} sc1")
    for i in range(24):
        k(f"v_mov_b32 v{40+i}, 0")
    for kk in range(16):
        Lr = k.newlab("retry"); Lc = k.newlab("cont")
        k(f"""
        s_waitcnt vmcnt({15-kk})
        v_max_u32 v6, v{64+4*kk}, v{66+4*kk}
        v_cmp_eq_u32 vcc, -1, v6
        s_cbranch_vccnz {Lr}
        """)
        k.label(Lc)
        retry.append((Lr, Lc, kk))
        M = f"v[{64+4*kk}:{67+4*kk}]"
        for jj in range(4):
            d = 40 + 4*jj
            k(f"v_mfma_f32_16x16x32_bf16 v[{d}:{d+3}], {wreg(jj,kk)}, {M}, v[{d}:{d+3}]")
        for jj in range(4, 6):
            d = 40 + 4*jj
            k(f"v_mfma_f32_16x16x32_bf16 v[{d}:{d+3}], {M}, {wreg(jj,kk)}, v[{d}:{d+3}]")
    k("s_nop 7")
    for i in range(4):
        k(f"v_cvt_pk_bf16_f32 v{6+i}, v{40+2*i}, v{41+2*i}")
    for i in range(4):
        k(f"v_cvt_pk_bf16_f32 v{10+i}, v{48+2*i}, v{49+2*i}")
    for i in range(4):
        k(f"v_cvt_pk_bf16_f32 v{14+i}, v{56+2*i}, v{57+2*i}")
    k(f"""
    s_lshl_b32 s22, s12, 10            ; w*1024
    s_add_u32 s22, s22, s24            ; s24 = (s*32+h)*4096
    v_add_u32 v18, s22, v5
    v_add_u32 v18, {KM_F}, v18
    global_store_dwordx4 v18, v[10:13], s[4:5]
    v_lshrrev_b32 v19, 1, v5           ; lane*8
    v_add_u32 v19, s22, v19
    v_add_u32 v19, {VM_F}, v19
    global_store_dwordx2 v19, v[14:15], s[4:5]
    global_store_dwordx2 v19, v[16:17], s[4:5] offset:512
    s_cmp_eq_u32 s13, 63
    s_cbranch_scc1 {Ldone}
    """)
    k(f"""
    v_mfma_f32_16x16x32_bf16 v[64:67], v[10:13], v[6:9], 0
    v_mfma_f32_16x16x32_bf16 v[68:71], v[24:27], v[6:9], 0
    v_mfma_f32_16x16x32_bf16 v[72:75], v[28:31], v[6:9], 0
    s_nop 7
    ds_write_b128 v20, v[64:67]
    ds_write_b128 v20, v[68:71] offset:1024
    ds_write_b128 v20, v[72:75] offset:2048
    s_waitcnt lgkmcnt(0)
    s_barrier
    """)
    for w in range(4):
        for t in range(3):
            b = 76 + (w*3+t)*4
            k(f"ds_read_b128 v[{b}:{b+3}], v5 offset:{LDS_SX + w*3072 + t*1024}")
    k("s_waitcnt lgkmcnt(0)")
    for i in range(0, 12, 2):
        k(f"v_pk_add_f32 v[{64+i}:{65+i}], v[{76+i}:{77+i}], v[{88+i}:{89+i}]")
        k(f"v_pk_add_f32 v[{76+i}:{77+i}], v[{100+i}:{101+i}], v[{112+i}:{113+i}]")
    for i in range(0, 12, 2):
        k(f"v_pk_add_f32 v[{64+i}:{65+i}], v[{64+i}:{65+i}], v[{76+i}:{77+i}]")
    k(f"s_mov_b32 s22, {SCALE}")
    for i in range(0, 12, 2):
        a, b = 64+i, 65+i
        k(f"""
        v_cvt_pk_bf16_f32 v76, v{a}, v{b}
        v_lshlrev_b32 v{a}, 16, v76
        v_and_b32 v{b}, 0xffff0000, v76
        v_mul_f32 v{a}, s22, v{a}
        v_mul_f32 v{b}, s22, v{b}
        v_cvt_pk_bf16_f32 v76, v{a}, v{b}
        v_lshlrev_b32 v{a}, 16, v76
        v_and_b32 v{b}, 0xffff0000, v76
        """)
    k("v_mov_b32 v77, 0xff800000")
    for i in range(4):
        k(f"v_cndmask_b32 v{64+i}, v{64+i}, v77, s[32:33]")
    k("v_max3_f32 v76, v64, v65, v66")
    for i in range(67, 75, 2):
        k(f"v_max3_f32 v76, v76, v{i}, v{i+1}")
    k("v_max_f32 v76, v76, v75")
    xlane_max_g(k, 76, 77, 78)
    k(f"s_mov_b32 s22, {LOG2E}")
    for i in range(12):
        k(f"v_sub_f32 v{64+i}, v{64+i}, v76")
        k(f"v_mul_f32 v{64+i}, s22, v{64+i}")
        k(f"v_exp_f32 v{64+i}, v{64+i}")
    k("s_nop 0\nv_add_f32 v76, v64, v65")
    for i in range(2, 12):
        k(f"v_add_f32 v76, v76, v{64+i}")
    xlane_sum_g(k, 76, 77, 78)
    k("v_rcp_f32 v76, v76\ns_nop 0")
    for i in range(12):
        k(f"v_mul_f32 v{64+i}, v{64+i}, v76")
    k("v_cvt_pk_bf16_f32 v80, v64, v65\nv_cvt_pk_bf16_f32 v81, v66, v67")
    for i in range(4):
        k(f"v_cvt_pk_bf16_f32 v{84+i}, v{68+2*i}, v{69+2*i}")
    k("s_nop 1")
    k(f"""
    v_mfma_f32_16x16x32_bf16 v[64:67], v[32:35], v[84:87], 0
    v_mfma_f32_16x16x32_bf16 v[68:71], v[36:39], v[84:87], 0
    v_mfma_f32_16x16x16_bf16 v[64:67], v[14:15], v[80:81], v[64:67]
    v_mfma_f32_16x16x16_bf16 v[68:71], v[16:17], v[80:81], v[68:71]
    """)
    k(f"""
    s_add_u32 s25, s25, {32*8192}
    s_lshl_b32 s22, s12, 10
    s_add_u32 s22, s22, s25
    v_add_u32 v18, s22, v5
    v_add_u32 v19, {K_F}, v18
    v_add_u32 v21, 4096, v19
    s_lshl_b32 s22, s12, 11
    s_add_u32 s22, s22, s25
    v_add_u32 v18, s22, v5
    v_add_u32 v18, {V_F}, v18
    s_nop 3
    v_cvt_pk_bf16_f32 v88, v64, v65
    v_cvt_pk_bf16_f32 v89, v66, v67
    v_cvt_pk_bf16_f32 v90, v68, v69
    v_cvt_pk_bf16_f32 v91, v70, v71
    global_load_dwordx4 v[24:27], v19, s[4:5]
    global_load_dwordx4 v[28:31], v21, s[4:5]
    global_load_dwordx4 v[32:35], v18, s[4:5]
    global_load_dwordx4 v[36:39], v18, s[4:5] offset:1024
    ds_write_b128 v22, v[88:91]
    s_waitcnt lgkmcnt(0)
    s_barrier
    """)
    for w in range(4):
        k(f"ds_read_b128 v[{92+4*w}:{95+4*w}], v5 offset:{LDS_OX + w*1024}")
    slots = [64, 68, 72, 76, 80, 84, 88, 108, 112, 116, 120, 124]
    NS = len(slots)
    accs = [40, 44, 48, 52, 56, 60, 6, 10]
    def rd(i):
        sl = slots[i % NS]
        k(f"ds_read_b128 v[{sl}:{sl+3}], v23 offset:{i*1024}")
    for i in range(NS):
        rd(i)
    k(f"""
    s_and_b32 s22, s13, 1
    s_lshl_b32 s22, s22, 19
    s_add_u32 s22, s22, s27
    v_add_u32 v18, s22, v16_PL
    """.replace("v16_PL", "v2") )
    for i in range(32):
        dtl, w = i // 4, i % 4
        outstanding = min(32, i + NS) - (i + 1)
        k(f"s_waitcnt lgkmcnt({min(outstanding,15)})")
        sl = slots[i % NS]; d = accs[dtl]
        c = "0" if w == 0 else f"v[{d}:{d+3}]"
        k(f"v_mfma_f32_16x16x32_bf16 v[{d}:{d+3}], v[{sl}:{sl+3}], v[{92+4*w}:{95+4*w}], {c}")
        if i + NS < 32:
            rd(i + NS)
        if w == 3 and dtl >= 1:
            emit_pstore(k, accs[dtl-1], st)
    k("s_nop 7")
    emit_pstore(k, accs[7], st)
    k(f"""
    s_cmp_lg_u32 s12, 0
    s_cbranch_scc1 {Lnored}
    s_and_b32 s22, s13, 1
    s_lshl_b32 s22, s22, 19
    s_add_u32 s22, s22, s28            ; s28 = PRING + h*16384
    v_add_u32 v18, s22, v5
    v_add_u32 v19, 4096, v18
    v_add_u32 v21, 4096, v19
    v_add_u32 v6, 4096, v21
    """)
    Lp = k.newlab("redpoll")
    k.label(Lp)
    av = [18, 19, 21, 6]
    for i in range(16):
        k(f"global_load_dwordx4 v[{64+4*i}:{67+4*i}], v{av[i//4]}, s[4:5] offset:{(i%4)*1024} sc1")
    k("s_waitcnt vmcnt(0)")
    k("v_max3_u32 v7, v64, v68, v72")
    for i in range(3, 15, 2):
        k(f"v_max3_u32 v7, v7, v{64+4*i}, v{68+4*i}")
    k("v_max_u32 v7, v7, v124")
    k(f"""
    v_cmp_eq_u32 vcc, -1, v7
    s_sub_u32 s40, s40, 1
    s_cbranch_scc1 {Ldead}
    s_cbranch_vccnz {Lp}
    """)
    for st_ in (8, 4, 2, 1):
        for i in range(st_):
            a = 64+4*i; b = 64+4*(i+st_)
            k(f"v_pk_add_f32 v[{a}:{a+1}], v[{a}:{a+1}], v[{b}:{b+1}]")
            k(f"v_pk_add_f32 v[{a+2}:{a+3}], v[{a+2}:{a+3}], v[{b+2}:{b+3}]")
    for i in range(4):
        k(f"v_mov_b32 v{68+i}, v{64+i}")
    k("s_nop 1")
    for i in range(4):
        k(f"v_permlane32_swap_b32 v{64+i}, v{68+i}")
    k("s_nop 1")
    for i in range(4):
        k(f"v_add_f32 v{64+i}, v{64+i}, v{68+i}")
    k(f"""
    v_cvt_pk_bf16_f32 v72, v64, v65
    v_cvt_pk_bf16_f32 v73, v66, v67
    v_min_u32 v72, 0xfffffffe, v72
    v_min_u32 v73, 0xfffffffe, v73
    v_add_u32 v7, s29, v3_PL           ; s29 = MRING + ((s+1)%3)*8192 ; v3_PL = t*1024 + (16h+4g)*2
    s_mov_b32 exec_lo, -1
    s_mov_b32 exec_hi, 0
    global_store_dwordx2 v7, v[72:73], s[4:5]{st}
    v_mov_b32 v74, -1
    v_mov_b32 v75, -1
    v_add_u32 v7, s34, v3_PL           ; s34 = MRING + (s%3)*8192
    global_store_dwordx2 v7, v[74:75], s[4:5]{st}
    s_mov_b64 exec, -1
    v_mov_b32 v76, -1
    v_mov_b32 v77, -1
    v_mov_b32 v78, -1
    v_mov_b32 v79, -1
    """.replace("v3_PL", "v3"))
    for i in range(16):
        k(f"global_store_dwordx4 v{av[i//4]}, v[76:79], s[4:5] offset:{(i%4)*1024}{st}")
    k.label(Lnored)
    k(f"""
    s_add_u32 s13, s13, 1
    s_add_u32 s24, s24, {32*4096}
    s_mov_b32 s34, s29
    s_add_u32 s20, s4, s29
    s_addc_u32 s21, s5, 0
    s_add_u32 s29, s29, 8192
    s_cmp_eq_u32 s29, {MRING + 3*8192}
    s_cselect_b32 s29, {MRING}, s29
    s_branch {Lloop}
    """)
    for (Lr, Lc, kk) in retry:
        k.label(Lr)
        k(f"""
        global_load_dwordx4 v[{64+4*kk}:{67+4*kk}], v4, s[20:21] offset:{kk*64} sc1
        s_waitcnt vmcnt(0)
        v_max_u32 v6, v{64+4*kk}, v{66+4*kk}
        v_cmp_eq_u32 vcc, -1, v6
        s_sub_u32 s40, s40, 1
        s_cbranch_scc1 {Ldead}
        s_cbranch_vccnz {Lr}
        s_branch {Lc}
        """)
    k.label(Ldone)
    k.label(Ldead)
    k("s_endpgm")

def emit_pstore(k, d, st):
    for i in range(4):
        k(f"v_min_u32 v{d+i}, 0xfffffffe, v{d+i}")
    k(f"""
    s_mov_b64 exec, s[30:31]
    global_store_dwordx4 v18, v[{d}:{d+3}], s[4:5]{st}
    s_mov_b64 exec, -1
    v_add_u32 v18, 16384, v18
    """)

def gen_chain():
    k = Kern("chain_kernel", vgpr=512, sgpr=64, accum=256)
    Lend, Lskip, Lpoll, Lgot, Lnotlast, Lslow, Lwr, Lcand, Lno, Lnoto = [k.newlab() for _ in range(10)]
    k(f"""
    s_cmp_ge_u32 s2, 256
    s_cbranch_scc1 {Lend}
    s_load_dwordx2 s[4:5], s[0:1], {KA_WS}
    s_load_dwordx2 s[6:7], s[0:1], {KA_MEM0}
    s_load_dwordx2 s[8:9], s[0:1], {KA_DBG}
    s_getreg_b32 s14, hwreg(HW_REG_XCC_ID)
    s_and_b32 s14, s14, 7
    v_lshrrev_b32 v1, 6, v0
    s_nop 0
    v_readfirstlane_b32 s12, v1
    v_mov_b32 v10, {LDS_ROLE}
    s_waitcnt lgkmcnt(0)
    s_cmp_lg_u32 s12, 0
    s_cbranch_scc1 {Lskip}
    s_mov_b64 exec, 1
    s_lshl_b32 s15, s14, 2
    v_mov_b32 v1, s15
    v_mov_b32 v2, 1
    v_mov_b32 v3, 68
    global_atomic_add v4, v1, v2, s[8:9] sc0
    global_atomic_add v5, v3, v2, s[8:9] sc0
    s_waitcnt vmcnt(0)
    v_readfirstlane_b32 s16, v4
    v_readfirstlane_b32 s17, v5
    v_mov_b32 v3, 64
    s_add_u32 s18, s14, 1
    s_cmp_lg_u32 s16, 31
    s_cbranch_scc1 {Lnotlast}
    v_mov_b32 v6, s18
    v_mov_b32 v7, 0
    global_atomic_cmpswap v3, v[6:7], s[8:9]
    s_waitcnt vmcnt(0)
    """)
    k.label(Lnotlast)
    k(f"""
    s_mov_b32 s10, -1
    s_mov_b32 s11, 0
    s_cmp_lt_u32 s16, 32
    s_cbranch_scc1 {Lcand}
    s_cmp_lt_u32 s17, 32
    s_cbranch_scc0 {Lwr}
    """)
    k.label(Lcand)
    k("s_mov_b32 s19, 0")
    k.label(Lpoll)
    k(f"""
    global_load_dword v4, v3, s[8:9] sc1
    s_waitcnt vmcnt(0)
    v_readfirstlane_b32 s15, v4
    s_cmp_lg_u32 s15, 0
    s_cbranch_scc1 {Lgot}
    s_add_u32 s19, s19, 1
    s_cmp_lt_u32 s19, 20000
    s_cbranch_scc1 {Lpoll}
    v_mov_b32 v6, 0x100
    v_mov_b32 v7, 0
    global_atomic_cmpswap v3, v[6:7], s[8:9]
    s_waitcnt vmcnt(0)
    s_mov_b32 s19, 0
    s_branch {Lpoll}
    """)
    k.label(Lgot)
    k(f"""
    s_cmp_eq_u32 s15, s18
    s_cbranch_scc0 {Lno}
    s_cmp_lt_u32 s16, 32
    s_cbranch_scc0 {Lwr}
    s_mov_b32 s10, s16
    s_mov_b32 s11, 1
    s_branch {Lwr}
    """)
    k.label(Lno)
    k(f"""
    s_cmp_eq_u32 s15, 0x100
    s_cbranch_scc0 {Lwr}
    s_cmp_lt_u32 s17, 32
    s_cbranch_scc0 {Lwr}
    s_mov_b32 s10, s17
    """)
    k.label(Lwr)
    k(f"""
    v_mov_b32 v6, s10
    v_mov_b32 v7, s11
    ds_write_b64 v10, v[6:7]
    s_mov_b64 exec, -1
    """)
    k.label(Lskip)
    k(f"""
    s_waitcnt lgkmcnt(0)
    s_barrier
    ds_read_b64 v[6:7], v10
    s_waitcnt lgkmcnt(0)
    v_readfirstlane_b32 s10, v6
    v_readfirstlane_b32 s11, v7
    s_nop 3
    s_cmp_eq_u32 s10, -1
    s_cbranch_scc1 {Lend}
    """)
    k(f"""
    v_and_b32 v1, 63, v0
    v_lshlrev_b32 v5, 4, v1            ; lane*16
    v_bfe_u32 v6, v0, 4, 2             ; g
    v_and_b32 v7, 15, v0               ; c
    v_and_b32 v4, 7, v7
    v_lshlrev_b32 v4, 10, v4
    v_lshl_add_u32 v4, v6, 4, v4
    s_mov_b32 s30, 0x00ff00ff
    s_mov_b32 s31, 0x00ff00ff
    s_mov_b32 s32, 0
    s_mov_b32 s33, -1
    ; v2 = (t*4+g)*16 (partial store lane offset)
    v_lshlrev_b32 v2, 2, v7
    v_add_u32 v2, v2, v6
    v_lshlrev_b32 v2, 4, v2
    ; v3 = (l>>2)*1024 + (16h + 4(l&3))*2   (reducer publish offset, lanes 0..31)
    v_bfe_u32 v3, v1, 2, 3
    v_lshlrev_b32 v3, 10, v3
    v_and_b32 v8, 3, v1
    v_lshl_add_u32 v3, v8, 3, v3
    s_lshl_b32 s22, s10, 5
    v_add_u32 v3, s22, v3
    s_mul_i32 s22, s12, 3072
    s_add_u32 s22, s22, {LDS_SX}
    v_add_u32 v20, s22, v5
    s_lshl_b32 s22, s12, 10
    s_add_u32 s22, s22, {LDS_OX}
    v_add_u32 v22, s22, v5
    s_lshl_b32 s22, s12, 15
    s_add_u32 s22, s22, {LDS_WO}
    v_add_u32 v23, s22, v5
    ; scalars
    s_mov_b32 s13, 0
    s_lshl_b32 s24, s10, 12            ; (0*32+h)*4096
    s_lshl_b32 s25, s10, 13            ; (0*32+h)*8192
    s_lshl_b32 s27, s12, 17            ; 8w*32*512
    s_lshl_b32 s22, s10, 9
    s_add_u32 s27, s27, s22
    s_add_u32 s27, s27, {PRING}
    s_lshl_b32 s28, s10, 14
    s_add_u32 s28, s28, {PRING}
    s_mov_b32 s29, {MRING + 8192}
    s_mov_b32 s34, {MRING}
    s_mov_b32 s20, s6
    s_mov_b32 s21, s7
    s_mov_b32 s40, 0x200000
    s_mov_b32 s16, s4
    s_and_b32 s17, s5, 0xffff
    s_mov_b32 s18, 0x10000000
    s_mov_b32 s19, 0x00020000
    """)
    k(f"""
    s_lshl_b32 s22, s12, 20            ; 8w*128KB
    s_lshl_b32 s23, s10, 12
    s_add_u32 s22, s22, s23
    s_add_u32 s22, s22, {WO_F}
    v_add_u32 v8, s22, v5
    s_lshl_b32 s23, s12, 15
    """)
    for i in range(8):
        k(f"s_add_u32 s26, s23, {i*4096 + LDS_WO}\ns_mov_b32 m0, s26\ns_mov_b32 s26, {i*131072}")
        for w in range(4):
            k(f"buffer_load_dwordx4 v8, s[16:19], s26 offen offset:{w*1024} lds")
    jl = [0, 1, 8, 9, 16, 17]
    k(f"""
    s_mul_i32 s22, s10, {24*16384}
    s_lshl_b32 s23, s12, 15            ; 2w*16KB
    s_add_u32 s22, s22, s23
    v_add_u32 v8, s22, v5
    """)
    for jj in range(6):
        for q in range(4):
            k(f"v_add_u32 v9, {WQKV_F + jl[jj]*16384 + q*4096}, v8")
            for r in range(4):
                k(f"global_load_dwordx4 {wreg(jj, q*4+r)}, v9, s[4:5] offset:{r*1024}")
    k(f"""
    s_lshl_b32 s22, s12, 10
    s_add_u32 s22, s22, s25
    v_add_u32 v18, s22, v5
    v_add_u32 v19, {K_F}, v18
    v_add_u32 v21, 4096, v19
    s_lshl_b32 s22, s12, 11
    s_add_u32 s22, s22, s25
    v_add_u32 v18, s22, v5
    v_add_u32 v18, {V_F}, v18
    global_load_dwordx4 v[24:27], v19, s[4:5]
    global_load_dwordx4 v[28:31], v21, s[4:5]
    global_load_dwordx4 v[32:35], v18, s[4:5]
    global_load_dwordx4 v[36:39], v18, s[4:5] offset:1024
    """)
    k(f"""
    s_waitcnt vmcnt(0)
    s_barrier
    s_cmp_eq_u32 s11, 0
    s_cbranch_scc1 {Lslow}
    """)
    chain_loop(k, True)
    k.label(Lslow)
    chain_loop(k, False)
    k.label(Lend)
    k("s_endpgm")
    return k, f"grid=(256,1,1) block=(256,1,1) lds={LDS_CHAIN}"
```

```python
from common import *

NST = 4
def gemm_setup(k):
    k(f"""
    s_load_dwordx2 s[4:5], s[0:1], {KA_WS}
    v_and_b32 v1, 63, v0
    v_lshrrev_b32 v4, 6, v0
    v_bfe_u32 v2, v0, 4, 2
    v_and_b32 v3, 15, v0
    s_nop 0
    v_readfirstlane_b32 s12, v4
    s_waitcnt lgkmcnt(0)
    s_mov_b32 s8, s4
    s_and_b32 s9, s5, 0xffff
    s_mov_b32 s10, 0x10000000
    s_mov_b32 s11, 0x00020000
    """)

def gemm_core(k, nk, opt, sA, strideA, sB, strideB, relB=None, halfB=None):
    if relB is None:
        relB = [i*strideB for i in range(4)]
        halfB = 4*strideB
    relA = [i*strideA for i in range(4)]
    k(f"""
    s_and_b32 s13, s12, 1
    s_mul_i32 s14, s13, {4*strideA}
    s_add_u32 s14, s14, s{sA}
    s_mul_i32 s15, s13, {halfB}
    s_add_u32 s15, s15, s{sB}
    s_cmp_lt_u32 s12, 2
    s_cselect_b32 s14, s14, s15
    v_lshlrev_b32 v8, 4, v1            ; lane*16
    v_add_u32 v4, s14, v8
    """)
    for i in range(1, 4):
        k(f"""
        s_mov_b32 s16, {relA[i] - i*1024}
        s_mov_b32 s17, {relB[i] - i*1024}
        s_cselect_b32 s16, s16, s17
        v_add_u32 v{4+i}, s16, v4
        """)
    k(f"""
    s_lshl_b32 s17, s12, 12
    s_lshr_b32 s18, s12, 1             ; wm
    s_lshl_b32 s18, s18, 12
    v_add_u32 v9, s18, v8
    s_lshl_b32 s19, s13, 12
    v_add_u32 v10, s19, v8
    v_add_u32 v10, 8192, v10
    """)
    def issue(st_k):
        slot = st_k % NST
        k(f"s_add_u32 s13, s17, {slot*16384}\ns_mov_b32 m0, s13\ns_mov_b32 s13, {st_k*1024}")
        for i in range(4):
            k(f"buffer_load_dwordx4 v{4+i}, s[8:11], s13 offen offset:{i*1024} lds")
    for i in range(64):
        k(f"v_mov_b32 v{64+i}, 0")
    for st in range(min(NST-1, nk)):
        issue(st)
    opts = opt if isinstance(opt, list) else [opt]*4
    for kk in range(nk):
        rem = min(nk-1, kk+NST-2) - kk
        k(f"s_waitcnt vmcnt({4*rem})")
        k("s_barrier")
        if kk + NST - 1 < nk:
            issue(kk + NST - 1)
        slot = kk % NST
        for a in range(4):
            k(f"ds_read_b128 v[{32+4*a}:{35+4*a}], v9 offset:{slot*16384 + a*1024}")
        for b in range(4):
            k(f"ds_read_b128 v[{48+4*b}:{51+4*b}], v10 offset:{slot*16384 + b*1024}")
        k("s_waitcnt lgkmcnt(0)")
        for a in range(4):
            for b in range(4):
                d = 64 + (a*4+b)*4
                A = f"v[{32+4*a}:{35+4*a}]"; B = f"v[{48+4*b}:{51+4*b}]"
                if opts[b] == 1:
                    k(f"v_mfma_f32_16x16x32_bf16 v[{d}:{d+3}], {A}, {B}, v[{d}:{d+3}]")
                else:
                    k(f"v_mfma_f32_16x16x32_bf16 v[{d}:{d+3}], {B}, {A}, v[{d}:{d+3}]")
    k("s_nop 7\ns_nop 1")

def gen_g1():
    k = Kern("g1_kernel", vgpr=128, sgpr=40)
    Lend, Lv = k.newlab(), k.newlab()
    k(f"s_cmp_ge_u32 s2, 1536\ns_cbranch_scc1 {Lend}")
    gemm_setup(k)
    k(f"""
    s_and_b32 s20, s2, 15              ; tb
    s_lshr_b32 s21, s2, 4              ; cb 0..95
    s_lshr_b32 s22, s21, 5             ; which 0..2
    s_and_b32 s23, s21, 31             ; h
    s_lshl_b32 s24, s20, 17
    s_add_u32 s24, s24, {XN_F}
    s_mul_i32 s25, s23, 24
    s_lshl_b32 s26, s22, 3
    s_add_u32 s25, s25, s26
    s_lshl_b32 s25, s25, 14
    s_add_u32 s25, s25, {WQKV_F}
    s_cmp_eq_u32 s22, 2
    s_cbranch_scc1 {Lv}
    """)
    gemm_core(k, 16, 2, 24, 16384, 25, 16384)
    k(f"""
    s_mov_b32 s26, {Q_F}
    s_mov_b32 s27, {K_F}
    s_cmp_eq_u32 s22, 0
    s_cselect_b32 s26, s26, s27
    s_lshr_b32 s27, s12, 1             ; wm
    s_and_b32 s28, s12, 1              ; wn
    s_lshl_b32 s29, s20, 2
    s_lshl_b32 s30, s27, 1
    s_add_u32 s29, s29, s30
    s_lshl_b32 s29, s29, 5
    s_add_u32 s29, s29, s23            ; seg0*32+h
    s_lshl_b32 s29, s29, 13            ; *8KB
    s_add_u32 s26, s26, s29
    s_lshl_b32 s28, s28, 11            ; 2wn*1024
    s_add_u32 s26, s26, s28
    v_lshlrev_b32 v4, 4, v1
    v_add_u32 v4, s26, v4
    v_add_u32 v5, 4096, v4
    v_add_u32 v6, {32*8192}, v4
    v_add_u32 v7, 4096, v6
    """)
    for a in range(4):
        for p in range(2):
            d0 = 64 + (a*4+2*p)*4; d1 = d0+4
            t = 32 + 4*((a*2+p) % 4)
            k(f"""
            v_cvt_pk_bf16_f32 v{t}, v{d0}, v{d0+1}
            v_cvt_pk_bf16_f32 v{t+1}, v{d0+2}, v{d0+3}
            v_cvt_pk_bf16_f32 v{t+2}, v{d1}, v{d1+1}
            v_cvt_pk_bf16_f32 v{t+3}, v{d1+2}, v{d1+3}
            global_store_dwordx4 v{4 + a}, v[{t}:{t+3}], s[4:5] offset:{p*1024}
            """)
    k(f"s_branch {Lend}")
    k.label(Lv)
    gemm_core(k, 16, 1, 24, 16384, 25, 16384)
    k(f"""
    s_lshr_b32 s27, s12, 1
    s_and_b32 s28, s12, 1
    s_lshl_b32 s29, s20, 2
    s_lshl_b32 s30, s27, 1
    s_add_u32 s29, s29, s30
    s_lshl_b32 s29, s29, 5
    s_add_u32 s29, s29, s23
    s_lshl_b32 s29, s29, 13
    s_add_u32 s26, s29, {V_F}
    s_lshl_b32 s28, s28, 12            ; 4wn*1024
    s_add_u32 s26, s26, s28
    v_lshlrev_b32 v4, 4, v1
    v_add_u32 v4, s26, v4
    v_add_u32 v5, {32*8192}, v4
    """)
    for ap in range(2):
        for b in range(4):
            d0 = 64 + ((2*ap)*4+b)*4; d1 = 64 + ((2*ap+1)*4+b)*4
            t = 32 + 4*b
            k(f"""
            v_cvt_pk_bf16_f32 v{t}, v{d0}, v{d0+1}
            v_cvt_pk_bf16_f32 v{t+1}, v{d0+2}, v{d0+3}
            v_cvt_pk_bf16_f32 v{t+2}, v{d1}, v{d1+1}
            v_cvt_pk_bf16_f32 v{t+3}, v{d1+2}, v{d1+3}
            global_store_dwordx4 v{4+ap}, v[{t}:{t+3}], s[4:5] offset:{b*1024}
            """)
    k.label(Lend)
    k("s_endpgm")
    return k, "grid=(1536,1,1) block=(256,1,1) lds=65536"

def gen_g2():
    k = Kern("g2_kernel", vgpr=128, sgpr=40)
    Lend = k.newlab()
    k(f"s_cmp_ge_u32 s2, 256\ns_cbranch_scc1 {Lend}")
    gemm_setup(k)
    k(f"""
    s_and_b32 s20, s2, 15              ; tb
    s_bfe_u32 s21, s2, 0x20004
    s_lshr_b32 s22, s2, 6              ; ks
    s_lshl_b32 s24, s20, 20
    s_lshl_b32 s26, s22, 15
    s_add_u32 s24, s24, s26
    s_add_u32 s24, s24, {O_F}
    s_lshl_b32 s25, s21, 20
    s_add_u32 s25, s25, s26
    s_add_u32 s25, s25, {WO_F}
    """)
    gemm_core(k, 32, 2, 24, 131072, 25, 131072)
    k(f"""
    s_lshr_b32 s27, s12, 1
    s_and_b32 s28, s12, 1
    s_lshl_b32 s29, s20, 7
    s_lshl_b32 s30, s27, 6
    s_add_u32 s29, s29, s30
    v_add_u32 v4, s29, v3              ; token (a=0)
    v_lshlrev_b32 v4, 11, v4
    s_lshl_b32 s30, s21, 9             ; db*128*4
    s_lshl_b32 s31, s28, 8             ; wn*64*4
    s_add_u32 s30, s30, s31
    s_lshl_b32 s31, s22, 22
    s_add_u32 s30, s30, s31
    s_add_u32 s30, s30, {PART}
    v_add_u32 v4, s30, v4
    v_lshl_add_u32 v4, v2, 4, v4       ; + g*16
    """)
    for a in range(4):
        for b in range(4):
            d = 64 + (a*4+b)*4
            k(f"global_store_dwordx4 v4, v[{d}:{d+3}], s[4:5] offset:{b*64}")
        if a < 3:
            k(f"v_add_u32 v4, {16*2048}, v4")
    k.label(Lend)
    k("s_endpgm")
    return k, "grid=(256,1,1) block=(256,1,1) lds=65536"
```

```python
from common import *

def rnd_pair(k, a, b, t):
    k(f"v_cvt_pk_bf16_f32 v{t}, v{a}, v{b}")
    k(f"v_lshlrev_b32 v{a}, 16, v{t}")
    k(f"v_and_b32 v{b}, 0xffff0000, v{t}")

def rnd1(k, a, t):
    k(f"v_cvt_pk_bf16_f32 v{t}, v{a}, v{a}")
    k(f"v_lshlrev_b32 v{a}, 16, v{t}")

def xlane_sum_g(k, x, t0, t1):
    k(f"""
    v_mov_b32 v{t0}, v{x}
    v_mov_b32 v{t1}, v{x}
    s_nop 1
    v_permlane32_swap_b32 v{t0}, v{t1}
    s_nop 1
    v_add_f32 v{x}, v{t0}, v{t1}
    v_mov_b32 v{t0}, v{x}
    v_mov_b32 v{t1}, v{x}
    s_nop 1
    v_permlane16_swap_b32 v{t0}, v{t1}
    s_nop 1
    v_add_f32 v{x}, v{t0}, v{t1}
    """)

def xlane_max_g(k, x, t0, t1):
    k(f"""
    v_mov_b32 v{t0}, v{x}
    v_mov_b32 v{t1}, v{x}
    s_nop 1
    v_permlane32_swap_b32 v{t0}, v{t1}
    s_nop 1
    v_max_f32 v{x}, v{t0}, v{t1}
    v_mov_b32 v{t0}, v{x}
    v_mov_b32 v{t1}, v{x}
    s_nop 1
    v_permlane16_swap_b32 v{t0}, v{t1}
    s_nop 1
    v_max_f32 v{x}, v{t0}, v{t1}
    """)

def gen_ln(name, src, xin_ws=None, xout_ws=None):
    k = Kern(name, vgpr=128, sgpr=32)
    Lend = k.newlab()
    k(f"""
    s_load_dwordx2 s[4:5], s[0:1], {KA_WS}
    s_load_dwordx2 s[6:7], s[0:1], {KA_X}
    s_cmp_ge_u32 s2, 128
    s_cbranch_scc1 {Lend}
    v_and_b32 v1, 15, v0           ; c
    v_bfe_u32 v2, v0, 4, 2         ; g
    v_lshrrev_b32 v3, 6, v0        ; wave
    s_lshl_b32 s8, s2, 4           ; tt*16
    v_add_u32 v4, s8, v1           ; row
    v_lshlrev_b32 v5, 10, v4       ; row*1024
    v_lshl_add_u32 v5, v3, 8, v5   ; + w*4*64
    v_lshl_add_u32 v5, v2, 4, v5   ; + g*16
    s_waitcnt lgkmcnt(0)
    """)
    if xin_ws is not None:
        k(f"s_add_u32 s6, s4, {xin_ws}\ns_addc_u32 s7, s5, 0")
    for q in range(4):
        k(f"global_load_dwordx4 v[{16+4*q}:{19+4*q}], v5, s[6:7] offset:{64*q}")
    if src == 'part':
        k(f"""
        v_lshlrev_b32 v6, 11, v4
        v_lshl_add_u32 v6, v3, 9, v6
        v_lshl_add_u32 v6, v2, 5, v6
        v_add_u32 v6, {PART}, v6
        """)
        for ks in range(4):
            base = 64 if ks == 0 else 96
            for q in range(4):
                for hh in range(2):
                    k(f"global_load_dwordx4 v[{base+8*q+4*hh}:{base+8*q+4*hh+3}], v6, s[4:5] offset:{128*q+16*hh}")
            if ks > 0:
                k("s_waitcnt vmcnt(0)")
                for i in range(0, 32, 2):
                    k(f"v_pk_add_f32 v[{64+i}:{65+i}], v[{64+i}:{65+i}], v[{96+i}:{97+i}]")
            if ks < 3:
                k(f"v_add_u32 v6, {2048*512*4}, v6")
    k("s_waitcnt vmcnt(0)")
    for j in range(16):
        k(f"v_lshlrev_b32 v{32+2*j}, 16, v{16+j}")
        k(f"v_and_b32 v{33+2*j}, 0xffff0000, v{16+j}")
    if src == 'part':
        for j in range(16):
            rnd_pair(k, 64+2*j, 65+2*j, 8)
            k(f"v_add_f32 v{32+2*j}, v{32+2*j}, v{64+2*j}")
            k(f"v_add_f32 v{33+2*j}, v{33+2*j}, v{65+2*j}")
            k(f"v_cvt_pk_bf16_f32 v{16+j}, v{32+2*j}, v{33+2*j}")
            k(f"v_lshlrev_b32 v{32+2*j}, 16, v{16+j}")
            k(f"v_and_b32 v{33+2*j}, 0xffff0000, v{16+j}")
        k(f"v_add_u32 v7, {xout_ws}, v5")
        for q in range(4):
            k(f"global_store_dwordx4 v7, v[{16+4*q}:{19+4*q}], s[4:5] offset:{64*q}")
    k("v_add_f32 v8, v32, v33")
    for j in range(2, 32):
        k(f"v_add_f32 v8, v8, v{32+j}")
    xlane_sum_g(k, 8, 9, 10)
    k(f"""
    v_lshlrev_b32 v11, 2, v1
    v_lshl_add_u32 v12, v3, 6, v11     ; w*64 + c*4
    ds_write_b32 v12, v8
    s_waitcnt lgkmcnt(0)
    s_barrier
    ds_read_b32 v8, v11
    ds_read_b32 v9, v11 offset:64
    ds_read_b32 v10, v11 offset:128
    ds_read_b32 v13, v11 offset:192
    s_waitcnt lgkmcnt(0)
    v_add_f32 v8, v8, v9
    v_add_f32 v10, v10, v13
    v_add_f32 v8, v8, v10
    v_mul_f32 v8, 0x3b000000, v8
    v_mov_b32 v14, 0
    """)
    for j in range(32):
        k(f"v_sub_f32 v9, v{32+j}, v8")
        k(f"v_fmac_f32 v14, v9, v9")
    xlane_sum_g(k, 14, 9, 10)
    k(f"""
    ds_write_b32 v12, v14 offset:256
    s_waitcnt lgkmcnt(0)
    s_barrier
    ds_read_b32 v14, v11 offset:256
    ds_read_b32 v9, v11 offset:320
    ds_read_b32 v10, v11 offset:384
    ds_read_b32 v13, v11 offset:448
    s_waitcnt lgkmcnt(0)
    v_add_f32 v14, v14, v9
    v_add_f32 v10, v10, v13
    v_add_f32 v14, v14, v10
    v_mul_f32 v14, 0x3b000000, v14     ; var
    """)
    rnd_pair(k, 8, 14, 9)
    k("v_add_f32 v14, 0x3727c5ac, v14")
    rnd1(k, 14, 9)
    k("v_sqrt_f32 v14, v14\ns_nop 0")
    rnd1(k, 14, 9)
    k("v_rcp_f32 v15, v14\ns_nop 0")
    for j in range(16):
        a, b = 32+2*j, 33+2*j
        k(f"v_sub_f32 v{a}, v{a}, v8\nv_sub_f32 v{b}, v{b}, v8")
        rnd_pair(k, a, b, 9)
        for x in (a, b):
            k(f"""
            v_mul_f32 v9, v{x}, v15
            v_fma_f32 v10, -v9, v14, v{x}
            v_fma_f32 v{x}, v10, v15, v9
            """)
        k(f"v_cvt_pk_bf16_f32 v{16+j}, v{a}, v{b}")
    k(f"""
    v_and_b32 v6, 63, v0
    v_lshlrev_b32 v6, 4, v6
    v_lshl_add_u32 v6, v3, 12, v6
    s_lshl_b32 s8, s2, 14
    v_add_u32 v6, s8, v6
    v_add_u32 v6, {XN_F}, v6
    """)
    for q in range(4):
        k(f"global_store_dwordx4 v6, v[{16+4*q}:{19+4*q}], s[4:5] offset:{1024*q}")
    k.label(Lend)
    k("s_endpgm")
    return k, "grid=(128,1,1) block=(256,1,1) lds=512"
```

```python
from common import *

def transpose_store(k, dst_v):
    k("s_mov_b32 s20, 0x05040100\ns_mov_b32 s21, 0x07060302")
    for mm in range(4):
        for p in range(4):
            r0 = 16 + 4*(2*p) + mm
            r1 = 16 + 4*(2*p+1) + mm
            k(f"v_perm_b32 v{48+4*(2*mm)+p}, v{r1}, v{r0}, s20")
            k(f"v_perm_b32 v{48+4*(2*mm+1)+p}, v{r1}, v{r0}, s21")
    for m in range(8):
        k(f"global_store_dwordx4 v{dst_v}, v[{48+4*m}:{48+4*m+3}], s[4:5] offset:{m*16}")

def load_rows(k, src_s, off_v, stride, perm):
    for i in range(8):
        ro = ((i & 3) + 16*(i >> 2)) if perm else i
        k(f"v_add_u32 v{8+i}, {ro*stride}, v{off_v}" if ro else f"v_mov_b32 v{8+i}, v{off_v}")
    for i in range(8):
        k(f"global_load_dwordx4 v[{16+4*i}:{16+4*i+3}], v{8+i}, s[{src_s}:{src_s+1}]")
    k("s_waitcnt vmcnt(0)")

def gen_prep():
    k = Kern("prep_kernel", vgpr=80, sgpr=32)
    k(f"""
    s_load_dwordx2 s[4:5], s[0:1], {KA_WS}
    s_load_dwordx4 s[8:11], s[0:1], {KA_WQ}
    s_load_dwordx4 s[12:15], s[0:1], {KA_WV}
    s_load_dwordx4 s[16:19], s[0:1], {KA_BWQKV}
    s_waitcnt lgkmcnt(0)
    """)
    Lwo, Lbq, Lbo, Lend, Lq = [k.newlab() for _ in range(5)]
    k(f"""
    s_cmp_ge_u32 s2, 592
    s_cbranch_scc1 {Lend}
    s_cmp_ge_u32 s2, 576
    s_cbranch_scc1 {Lbo}
    s_cmp_ge_u32 s2, 512
    s_cbranch_scc1 {Lbq}
    s_cmp_ge_u32 s2, 384
    s_cbranch_scc1 {Lwo}
    """)
    k(f"""
    s_lshr_b32 s22, s2, 7          ; which 0..2
    s_and_b32 s23, s2, 127
    s_mov_b32 s6, s8
    s_mov_b32 s7, s9
    s_cmp_eq_u32 s22, 1
    s_cselect_b32 s6, s10, s6
    s_cselect_b32 s7, s11, s7
    s_cmp_eq_u32 s22, 2
    s_cselect_b32 s6, s12, s6
    s_cselect_b32 s7, s13, s7
    s_lshl_b32 s24, s23, 8
    v_add_u32 v1, s24, v0          ; tau
    v_and_b32 v2, 511, v1          ; octet
    v_lshrrev_b32 v3, 9, v1        ; kg
    v_lshlrev_b32 v4, 16, v3
    v_lshl_add_u32 v4, v2, 4, v4   ; + octet*16
    """)
    load_rows(k, 6, 4, 8192, False)
    k(f"""
    v_lshrrev_b32 v5, 4, v2        ; h = octet>>4
    v_mul_u32_u24 v5, 24, v5
    v_bfe_u32 v6, v2, 1, 3         ; e0>>4
    v_add_u32 v5, v5, v6
    s_lshl_b32 s25, s22, 3
    v_add_u32 v5, s25, v5          ; h*24+j
    v_lshlrev_b32 v5, 4, v5
    v_lshrrev_b32 v6, 2, v3        ; kk
    v_add_u32 v5, v5, v6
    v_lshlrev_b32 v5, 6, v5        ; *64
    v_and_b32 v6, 3, v3
    v_lshl_add_u32 v5, v6, 4, v5   ; + g*16
    v_and_b32 v6, 1, v2
    v_lshl_add_u32 v5, v6, 3, v5   ; + c0
    v_lshlrev_b32 v5, 4, v5
    """)
    if WQKV_F: k(f"v_add_u32 v5, {WQKV_F}, v5")
    transpose_store(k, 5)
    k(f"s_branch {Lend}")
    k.label(Lwo)
    k(f"""
    s_sub_u32 s23, s2, 384
    s_lshl_b32 s24, s23, 8
    v_add_u32 v1, s24, v0          ; tau
    v_and_b32 v2, 63, v1           ; octet (d)
    v_lshrrev_b32 v3, 6, v1        ; hwg
    v_lshrrev_b32 v4, 2, v3        ; h*4+w
    v_lshlrev_b32 v4, 5, v4
    v_and_b32 v6, 3, v3
    v_lshl_add_u32 v4, v6, 2, v4   ; +4g
    v_lshlrev_b32 v4, 10, v4       ; *1024 B
    v_lshl_add_u32 v4, v2, 4, v4
    """)
    load_rows(k, 14, 4, 1024, True)
    k(f"""
    v_lshrrev_b32 v5, 1, v2        ; dt
    v_lshlrev_b32 v5, 7, v5        ; dt*128
    v_lshrrev_b32 v6, 2, v3        ; h*4+w
    v_add_u32 v5, v5, v6
    v_lshlrev_b32 v5, 6, v5
    v_and_b32 v6, 3, v3
    v_lshl_add_u32 v5, v6, 4, v5
    v_and_b32 v6, 1, v2
    v_lshl_add_u32 v5, v6, 3, v5
    v_lshlrev_b32 v5, 4, v5
    v_add_u32 v5, {WO_F}, v5
    """)
    transpose_store(k, 5)
    k(f"s_branch {Lend}")
    k.label(Lbq)
    k(f"""
    s_sub_u32 s23, s2, 512         ; kg
    v_cmp_gt_u32 vcc, 192, v0
    s_and_saveexec_b64 s[26:27], vcc
    s_cbranch_execz {Lend}
    s_mul_i32 s24, s23, {8*3072}
    v_lshlrev_b32 v4, 4, v0
    v_add_u32 v4, s24, v4
    """)
    load_rows(k, 16, 4, 3072, False)
    k(f"""
    v_lshrrev_b32 v5, 1, v0        ; j
    v_lshlrev_b32 v5, 4, v5
    s_lshr_b32 s25, s23, 2
    v_add_u32 v5, s25, v5
    v_lshlrev_b32 v5, 6, v5
    s_and_b32 s25, s23, 3
    s_lshl_b32 s25, s25, 4
    v_add_u32 v5, s25, v5
    v_and_b32 v6, 1, v0
    v_lshl_add_u32 v5, v6, 3, v5
    v_lshlrev_b32 v5, 4, v5
    v_add_u32 v5, {BQKV_F}, v5
    """)
    transpose_store(k, 5)
    k(f"s_branch {Lend}")
    k.label(Lbo)
    k(f"""
    s_sub_u32 s23, s2, 576
    s_lshl_b32 s24, s23, 8
    v_add_u32 v1, s24, v0
    v_and_b32 v2, 63, v1           ; octet
    v_lshrrev_b32 v3, 6, v1        ; kg
    v_lshrrev_b32 v4, 2, v3
    v_lshlrev_b32 v4, 5, v4
    v_and_b32 v6, 3, v3
    v_lshl_add_u32 v4, v6, 2, v4
    v_lshlrev_b32 v4, 10, v4
    v_lshl_add_u32 v4, v2, 4, v4
    """)
    load_rows(k, 18, 4, 1024, True)
    k(f"""
    v_lshrrev_b32 v5, 1, v2        ; dt
    v_lshlrev_b32 v5, 4, v5
    v_lshrrev_b32 v6, 2, v3
    v_add_u32 v5, v5, v6
    v_lshlrev_b32 v5, 6, v5
    v_and_b32 v6, 3, v3
    v_lshl_add_u32 v5, v6, 4, v5
    v_and_b32 v6, 1, v2
    v_lshl_add_u32 v5, v6, 3, v5
    v_lshlrev_b32 v5, 4, v5
    v_add_u32 v5, {BWO_F}, v5
    """)
    transpose_store(k, 5)
    k.label(Lend)
    k("s_endpgm")
    return k, "grid=(592,1,1) block=(256,1,1) lds=0"

def gen_fill():
    k = Kern("fill_kernel", vgpr=16, sgpr=16)
    Lend = k.newlab(); Lr = k.newlab()
    k(f"""
    s_load_dwordx2 s[4:5], s[0:1], {KA_WS}
    s_cmp_ge_u32 s2, 65
    s_cbranch_scc1 {Lend}
    v_mov_b32 v4, -1
    v_mov_b32 v5, -1
    v_mov_b32 v6, -1
    v_mov_b32 v7, -1
    s_lshl_b32 s6, s2, 14
    v_lshlrev_b32 v1, 4, v0
    v_add_u32 v1, s6, v1
    v_add_u32 v1, {PRING}, v1
    s_waitcnt lgkmcnt(0)
    """)
    for i in range(4):
        k(f"global_store_dwordx4 v1, v[4:7], s[4:5]")
        k(f"v_add_u32 v1, 4096, v1")
    k(f"""
    s_cmp_eq_u32 s2, 64
    s_cbranch_scc0 {Lend}
    """)
    for i in range(2):
        k(f"global_store_dwordx4 v1, v[4:7], s[4:5]")
        k(f"v_add_u32 v1, 4096, v1")
    k.label(Lend)
    k("s_endpgm")
    assert MRING == PRING + 0x100000
    return k, "grid=(65,1,1) block=(256,1,1) lds=0"
```

```python
import sys
from common import *
from k_prep import gen_prep, gen_fill
from k_ln import gen_ln
from k_gemm import gen_g1, gen_g2
from k_chain import gen_chain
from k_attn import gen_ta
from k_b import gen_g3, gen_kvred, gen_b2

HDR = open("interleave_layers__memory_aug_recurrent_mem_tr__linear_attn_block__prompt.s.ref").read().split("\n")
hdr = [l for l in HDR if l.startswith(";") and "@launch" not in l and "Override" not in l and "grid=ceil" not in l]

ks = {}
def reg(kk):
    k, launch = kk
    ks[k.name] = (k, launch)
    return k.name
prep = reg(gen_prep()); fill = reg(gen_fill())
ln0 = reg(gen_ln("ln0_kernel", 'input'))
ln1 = reg(gen_ln("ln1_kernel", 'part', None, X1))
ln3 = reg(gen_ln("ln3_kernel", 'part', X2, X3))
g1 = reg(gen_g1()); g2 = reg(gen_g2()); ch = reg(gen_chain()); ta = reg(gen_ta())
g3 = reg(gen_g3()); kvr = reg(gen_kvred())
b2a = reg(gen_b2("b2a_kernel", X1, X2, True))
b2b = reg(gen_b2("b2b_kernel", X3, None, False))
order = [prep, fill, ln0, g1, ch, ta, g2, ln1, g3, kvr, b2a, fill, g1, ch, ta, g2, ln3, g3, kvr, b2b]
if len(sys.argv) > 2:
    order = order[:int(sys.argv[2])]
out = "\n".join(hdr) + "\n"
for n in order:
    out += f"; @launch kernel={n} {ks[n][1]}\n"
out += '.amdgcn_target "amdgcn-amd-amdhsa--gfx950"\n.text\n'
for n,(k,_) in ks.items():
    out += k.text()
out += '.section .rodata,"a"\n'
for n,(k,_) in ks.items():
    out += k.desc()
open(sys.argv[1], "w").write(out)
print("written", len(out))
```

```python
from common import *
from k_ln import xlane_sum_g, xlane_max_g
from k_chain import SCALE, LOG2E

def gen_ta():
    k = Kern("ta_kernel", vgpr=200, sgpr=40)
    Lend = k.newlab()
    k(f"""
    s_cmp_ge_u32 s2, 512
    s_cbranch_scc1 {Lend}
    s_load_dwordx2 s[4:5], s[0:1], {KA_WS}
    v_and_b32 v1, 63, v0
    v_lshrrev_b32 v4, 6, v0
    v_bfe_u32 v2, v0, 4, 2
    v_and_b32 v3, 15, v0
    v_lshlrev_b32 v5, 4, v1
    s_nop 0
    v_readfirstlane_b32 s12, v4
    s_lshl_b32 s13, s2, 2
    s_add_u32 s13, s13, s12
    s_waitcnt lgkmcnt(0)
    """)
    ta_body(k, False)
    k.label(Lend)
    k("s_endpgm")
    return k, "grid=(512,1,1) block=(256,1,1) lds=0"

def ta_body(k, fused):
    sc = " sc1" if fused else ""
    k(f"""
    s_lshl_b32 s14, s13, 13            ; *8192
    s_lshl_b32 s15, s13, 12            ; *4096
    v_add_u32 v6, s14, v5
    v_add_u32 v7, {Q_F}, v6
    v_add_u32 v8, 4096, v7
    v_add_u32 v9, {K_F}, v6
    v_add_u32 v10, 4096, v9
    v_add_u32 v11, {V_F}, v6
    v_add_u32 v12, 4096, v11
    v_add_u32 v13, s15, v5
    v_add_u32 v13, {KM_F}, v13
    v_lshrrev_b32 v14, 1, v5
    s_lshr_b32 s16, s15, 1
    v_add_u32 v14, s16, v14
    v_add_u32 v14, {VM_F}, v14
    """)
    if not fused:
        for tt in range(2):
            for w in range(4):
                k(f"global_load_dwordx4 v[{16+(tt*4+w)*4}:{19+(tt*4+w)*4}], v{7+tt}, s[4:5] offset:{w*1024}")
    for w in range(4):
        k(f"global_load_dwordx4 v[{80+w*4}:{83+w*4}], v13, s[4:5] offset:{w*1024}{sc}")
    for tt in range(2):
        for w in range(4):
            k(f"global_load_dwordx4 v[{48+(tt*4+w)*4}:{51+(tt*4+w)*4}], v{9+tt}, s[4:5] offset:{w*1024}{sc}")
    for et in range(8):
        k(f"global_load_dwordx4 v[{96+et*4}:{99+et*4}], v{11+et//4}, s[4:5] offset:{(et%4)*1024}{sc}")
    for et in range(4):
        k(f"global_load_dwordx2 v[{128+et*2}:{129+et*2}], v14, s[4:5] offset:{et*512}{sc}")
    k("s_waitcnt vmcnt(12)")
    for tq in range(2):
        b = 144 + tq*12
        for w in range(4):
            c = "0" if w == 0 else f"v[{b}:{b+3}]"
            k(f"v_mfma_f32_16x16x32_bf16 v[{b}:{b+3}], v[{80+w*4}:{83+w*4}], v[{16+(tq*4+w)*4}:{19+(tq*4+w)*4}], {c}")
        for tk in range(tq+1):
            bb = b + 4 + 4*tk
            for w in range(4):
                c = "0" if w == 0 else f"v[{bb}:{bb+3}]"
                k(f"v_mfma_f32_16x16x32_bf16 v[{bb}:{bb+3}], v[{48+(tk*4+w)*4}:{51+(tk*4+w)*4}], v[{16+(tq*4+w)*4}:{19+(tq*4+w)*4}], {c}")
    k(f"""
    v_lshlrev_b32 v15, 2, v2
    s_mov_b32 s32, 0
    s_mov_b32 s33, -1
    """)
    for r in range(4):
        k(f"v_add_u32 v6, {r}, v15\nv_cmp_gt_u32 s[{20+2*r}:{21+2*r}], v6, v3")
    k(f"s_mov_b32 s30, {SCALE}\ns_mov_b32 s31, {LOG2E}\nv_mov_b32 v15, 0xff800000\ns_nop 4")
    for tq in range(2):
        b = 144 + tq*12
        n = 8 + 4*tq
        for i in range(0, n, 2):
            a, bb = b+i, b+i+1
            k(f"""
            v_cvt_pk_bf16_f32 v6, v{a}, v{bb}
            v_lshlrev_b32 v{a}, 16, v6
            v_and_b32 v{bb}, 0xffff0000, v6
            v_mul_f32 v{a}, s30, v{a}
            v_mul_f32 v{bb}, s30, v{bb}
            v_cvt_pk_bf16_f32 v6, v{a}, v{bb}
            v_lshlrev_b32 v{a}, 16, v6
            v_and_b32 v{bb}, 0xffff0000, v6
            """)
        for r in range(4):
            k(f"v_cndmask_b32 v{b+r}, v{b+r}, v15, s[32:33]")
            d = b + 4 + 4*tq + r
            k(f"v_cndmask_b32 v{d}, v{d}, v15, s[{20+2*r}:{21+2*r}]")
        k(f"v_max_f32 v6, v{b}, v{b+1}")
        for i in range(2, n, 2):
            k(f"v_max3_f32 v6, v6, v{b+i}, v{b+i+1}")
        xlane_max_g(k, 6, 7, 8)
        for i in range(n):
            k(f"v_sub_f32 v{b+i}, v{b+i}, v6\nv_mul_f32 v{b+i}, s31, v{b+i}\nv_exp_f32 v{b+i}, v{b+i}")
        k(f"s_nop 0\nv_add_f32 v6, v{b}, v{b+1}")
        for i in range(2, n):
            k(f"v_add_f32 v6, v6, v{b+i}")
        xlane_sum_g(k, 6, 7, 8)
        k("v_rcp_f32 v6, v6\ns_nop 0")
        for i in range(n):
            k(f"v_mul_f32 v{b+i}, v{b+i}, v6")
        p = 168 + tq*8
        k(f"v_cvt_pk_bf16_f32 v{p}, v{b}, v{b+1}\nv_cvt_pk_bf16_f32 v{p+1}, v{b+2}, v{b+3}")
        k(f"v_mov_b32 v{p+2}, 0\nv_mov_b32 v{p+3}, 0\nv_mov_b32 v7, v{p}\nv_mov_b32 v8, v{p+1}\ns_nop 1")
        k(f"v_permlane32_swap_b32 v{p+2}, v7\nv_permlane32_swap_b32 v{p+3}, v8")
        k(f"v_cvt_pk_bf16_f32 v{p+4}, v{b+4}, v{b+5}\nv_cvt_pk_bf16_f32 v{p+5}, v{b+6}, v{b+7}")
        if tq == 1:
            k(f"v_cvt_pk_bf16_f32 v{p+6}, v{b+8}, v{b+9}\nv_cvt_pk_bf16_f32 v{p+7}, v{b+10}, v{b+11}")
        else:
            k(f"v_mov_b32 v{p+6}, 0\nv_mov_b32 v{p+7}, 0")
    k("s_waitcnt vmcnt(0)\ns_nop 1")
    for tq in range(2):
        p = 168 + tq*8
        for et in range(8):
            d = 16 + (tq*8+et)*4
            k(f"v_mfma_f32_16x16x32_bf16 v[{d}:{d+3}], v[{96+et*4}:{99+et*4}], v[{p+4}:{p+7}], 0")
        for et in range(8):
            d = 16 + (tq*8+et)*4
            pp = p + 2*(et & 1)
            k(f"v_mfma_f32_16x16x16_bf16 v[{d}:{d+3}], v[{128+(et>>1)*2}:{129+(et>>1)*2}], v[{pp}:{pp+1}], v[{d}:{d+3}]")
    k(f"""
    s_lshr_b32 s16, s13, 5             ; seg
    s_and_b32 s17, s13, 31             ; h
    s_lshl_b32 s16, s16, 18            ; 2seg*128KB
    s_lshl_b32 s17, s17, 12
    s_add_u32 s16, s16, s17
    s_add_u32 s16, s16, {O_F}
    v_add_u32 v6, s16, v5
    v_add_u32 v7, 131072, v6
    s_nop 7
    """)
    for tq in range(2):
        for w in range(4):
            d0 = 16 + (tq*8+2*w)*4; d1 = d0+4
            t = 144 + 4*((tq*4+w) % 4)
            k(f"""
            v_cvt_pk_bf16_f32 v{t}, v{d0}, v{d0+1}
            v_cvt_pk_bf16_f32 v{t+1}, v{d0+2}, v{d0+3}
            v_cvt_pk_bf16_f32 v{t+2}, v{d1}, v{d1+1}
            v_cvt_pk_bf16_f32 v{t+3}, v{d1+2}, v{d1+3}
            global_store_dwordx4 v{6+tq}, v[{t}:{t+3}], s[4:5] offset:{w*1024}{sc}
            """)
```

```python
from common import *
from k_ln import xlane_sum_g, xlane_max_g

LDS_SX = 0
LDS_OX = LDS_SX + 12288
LDS_ROLE = LDS_OX + 4096
LDS_MX = 17408
LDS_WO = LDS_MX + 8*1040 + 64
LDS_CHAIN = LDS_WO + 131072
import os
STAMP = os.environ.get("STAMP") == "1"
STAMP2 = os.environ.get("STAMP2") == "1"
def stamp(k, i):
    if STAMP and not STAMP2:
        k(f"s_memtime s[{44+2*i}:{45+2*i}]")
def stamp2(k, i):
    if STAMP and STAMP2:
        k(f"s_memtime s[{44+2*i}:{45+2*i}]")


def wreg(jj, kk):
    R = (jj*16 + kk)*4
    if R < 256:
        return f"a[{R}:{R+3}]"
    R = 128 + R - 256
    return f"v[{R}:{R+3}]"

def wreg8(jj, c):
    R = (jj*16 + 2*c)*4
    if R < 256:
        return f"a[{R}:{R+7}]"
    R = 128 + R - 256
    return f"v[{R}:{R+7}]"

SCALE = 0x3db504f3
LOG2E = 0x3fb8aa3b

KX_OFF = 2176
def kv_prefetch(k, Ldead=None):
    if Ldead is not None:
        Lw = k.newlab("kvw"); Lo = k.newlab("kvo")
        k(f"""
        s_and_b32 s22, s13, 3
        s_cmp_lg_u32 s22, 0
        s_cbranch_scc1 {Lo}
        v_mov_b32 v6, s35
        """)
        k.label(Lw)
        k(f"""
        global_load_dword v7, v6, s[4:5] sc1
        s_waitcnt vmcnt(0)
        v_readfirstlane_b32 s22, v7
        s_sub_u32 s40, s40, 1
        s_cbranch_scc1 {Ldead}
        s_cmp_lt_u32 s22, 2
        s_cbranch_scc1 {Lw}
        s_add_u32 s35, s35, 128
        """)
        k.label(Lo)
    k(f"""
    v_add_u32 v18, s25, v5
    v_add_u32 v19, {K_F}, v18
    v_add_u32 v6, 4096, v19
    s_lshl_b32 s22, s12, 11
    v_add_u32 v18, s22, v18
    v_add_u32 v18, {V_F}, v18
    """)
    for i in range(8):
        k(f"global_load_dwordx4 v[{24+4*i}:{27+4*i}], v{19 if i < 4 else 6}, s[4:5] offset:{(i%4)*1024} sc1")
    k("global_load_dwordx4 v[56:59], v18, s[4:5] sc1\nglobal_load_dwordx4 v[60:63], v18, s[4:5] offset:1024 sc1")
def chain_loop(k, fast):
    st = "" if fast else " sc1"
    Lloop = k.newlab("loop"); Ldone = k.newlab("done"); Lnored = k.newlab("nored"); Ldead = k.newlab("dead")
    k.label(Lloop)
    stamp(k, 0)
    Lg = k.newlab("gpoll")
    k.label(Lg)
    k(f"""
    global_load_dwordx4 v[88:91], v4, s[20:21] sc1
    global_load_dwordx4 v[92:95], v4, s[20:21] offset:1024 sc1
    s_waitcnt vmcnt(0)
    v_max3_u32 v6, v88, v89, v90
    v_max3_u32 v7, v91, v92, v93
    v_max3_u32 v6, v6, v94, v95
    v_max_u32 v6, v6, v7
    v_cmp_eq_u32 vcc, -1, v6
    s_sub_u32 s40, s40, 1
    s_cbranch_scc1 {Ldead}
    s_cbranch_vccnz {Lg}
    ds_write_b128 v13, v[88:91]
    ds_write_b128 v13, v[92:95] offset:1040
    """)
    kv_prefetch(k, Ldead)
    k("s_waitcnt lgkmcnt(0)")
    for i in range(24):
        k(f"v_mov_b32 v{64+i}, 0")
    stamp(k, 1)
    k("s_barrier")
    for c in range(8):
        k(f"ds_read_b128 v[{88+4*c}:{91+4*c}], v1 offset:{LDS_MX + c*128}")
    for c in range(8):
        k(f"s_waitcnt lgkmcnt({7-c})")
        for jj in range(6):
            d = 64 + 4*jj
            k(f"v_smfmac_f32_16x16x64_bf16 v[{d}:{d+3}], v[{88+4*c}:{91+4*c}], {wreg8(jj,c)}, v16")
    stamp(k, 2); stamp2(k, 0)
    k("s_nop 7\ns_nop 3")
    for r in range(4):
        k(f"v_permlane32_swap_b32 v{64+r}, v{72+r}")
        k(f"v_permlane32_swap_b32 v{68+r}, v{76+r}")
        k(f"v_permlane32_swap_b32 v{80+r}, v{84+r}")
    k("s_nop 0")
    for r in range(0, 4, 2):
        k(f"v_pk_add_f32 v[{64+r}:{65+r}], v[{64+r}:{65+r}], v[{72+r}:{73+r}]")
        k(f"v_pk_add_f32 v[{68+r}:{69+r}], v[{68+r}:{69+r}], v[{76+r}:{77+r}]")
    for r in range(4):
        k(f"v_cvt_pk_bf16_f32 v{6+r}, v{64+r}, v{68+r}")
        k(f"ds_write_b32 v20, v{6+r} offset:{r*272}")
    for r in range(0, 4, 2):
        k(f"v_pk_add_f32 v[{80+r}:{81+r}], v[{80+r}:{81+r}], v[{84+r}:{85+r}]")
    k(f"""
    v_cvt_pk_bf16_f32 v14, v80, v81
    v_cvt_pk_bf16_f32 v15, v82, v83
    s_lshl_b32 s22, s12, 9
    s_lshr_b32 s23, s24, 1
    s_add_u32 s23, s23, s22            ; ((s*32+h)*4 + w)*512
    v_lshrrev_b32 v19, 1, v5
    v_add_u32 v19, s23, v19
    v_add_u32 v19, {VM_F}, v19
    s_waitcnt lgkmcnt(0)
    """)
    stamp2(k, 1)
    k("s_barrier")
    stamp2(k, 2)
    Llast = k.newlab("last")
    k(f"s_cmp_eq_u32 s13, 63\ns_cbranch_scc1 {Llast}")
    for w in range(4):
        k(f"ds_read_b128 v[{88+4*w}:{91+4*w}], v21 offset:{w*64}")
        k(f"ds_read_b128 v[{104+4*w}:{107+4*w}], v21 offset:{KX_OFF + w*64}")
    k("ds_read_b128 v[120:123], v17")
    k("s_waitcnt vmcnt(2)")
    stamp2(k, 3)
    for w in range(4):
        k(f"s_waitcnt lgkmcnt({7 - 2*w})")
        for t in (1, 2, 0):
            d = 64 + 4*t
            A = f"v[{104+4*w}:{107+4*w}]" if t == 0 else f"v[{24+((t-1)*4+w)*4}:{27+((t-1)*4+w)*4}]"
            c = "0" if w == 0 else f"v[{d}:{d+3}]"
            k(f"v_mfma_f32_16x16x32_bf16 v[{d}:{d+3}], {A}, v[{88+4*w}:{91+4*w}], {c}")
    k(f"""
    global_store_dwordx2 v19, v[14:15], s[4:5] sc1
    s_lshl_b32 s22, s12, 10
    s_add_u32 s22, s22, s24
    v_add_u32 v18, s22, v5
    v_add_u32 v18, {KM_F}, v18
    s_waitcnt lgkmcnt(0)
    global_store_dwordx4 v18, v[120:123], s[4:5] sc1
    """)
    slots = [76+4*i for i in range(11)] + [24+4*i for i in range(8)]
    NS = len(slots)
    def rd(i):
        sl = slots[i % NS]
        k(f"ds_read_b128 v[{sl}:{sl+3}], v23 offset:{i*1024}")
    rd(0); rd(1); rd(2)
    k(f"s_mov_b32 s22, {SCALE}\ns_mov_b32 s23, {SCALE}\ns_nop 1")
    nrd = 3
    T = [6, 7, 8, 9, 10, 11]
    for rep in range(2):
        for j in range(6):
            k(f"v_cvt_pk_bf16_f32 v{T[j]}, v{64+2*j}, v{65+2*j}")
        rd(nrd); rd(nrd+1); nrd += 2
        for j in range(6):
            k(f"v_lshlrev_b32 v{64+2*j}, 16, v{T[j]}")
        rd(nrd); rd(nrd+1); nrd += 2
        for j in range(6):
            k(f"v_and_b32 v{65+2*j}, 0xffff0000, v{T[j]}")
        rd(nrd); rd(nrd+1); nrd += 2
        if rep == 0:
            for j in range(6):
                k(f"v_pk_mul_f32 v[{64+2*j}:{65+2*j}], v[{64+2*j}:{65+2*j}], s[22:23]")
    stamp2(k, 4)
    k("v_mov_b32 v7, 0xff800000")
    for i in range(4):
        k(f"v_cndmask_b32 v{64+i}, v{64+i}, v7, s[32:33]")
    k("v_max3_f32 v6, v64, v65, v66\nv_max3_f32 v8, v67, v68, v69\nv_max3_f32 v9, v70, v71, v72\nv_max3_f32 v10, v73, v74, v75")
    k("v_max_f32 v6, v6, v8\nv_max_f32 v9, v9, v10\nv_max_f32 v6, v6, v9")
    while nrd < NS:
        rd(nrd); nrd += 1
    xlane_max_g(k, 6, 7, 8)
    stamp2(k, 5)
    k(f"s_mov_b32 s22, {LOG2E}\nv_mul_f32 v6, s22, v6")
    for i in range(12):
        k(f"v_fma_f32 v{64+i}, v{64+i}, s22, -v6")
    for i in range(12):
        k(f"v_exp_f32 v{64+i}, v{64+i}")
    k("s_nop 0")
    k("v_pk_add_f32 v[6:7], v[64:65], v[66:67]\nv_pk_add_f32 v[8:9], v[68:69], v[70:71]\nv_pk_add_f32 v[10:11], v[72:73], v[74:75]")
    k("v_pk_add_f32 v[6:7], v[6:7], v[8:9]\nv_pk_add_f32 v[6:7], v[6:7], v[10:11]")
    k("v_add_f32 v6, v6, v7")
    xlane_sum_g(k, 6, 7, 8)
    stamp2(k, 6)
    k("v_rcp_f32 v6, v6\ns_nop 0\nv_mov_b32 v7, v6")
    for i in range(0, 12, 2):
        k(f"v_pk_mul_f32 v[{64+i}:{65+i}], v[{64+i}:{65+i}], v[6:7]")
    k("""
    v_cvt_pk_bf16_f32 v120, v64, v65
    v_cvt_pk_bf16_f32 v121, v66, v67
    v_mov_b32 v122, 0
    v_mov_b32 v123, 0
    v_mov_b32 v8, v120
    v_mov_b32 v9, v121
    """)
    for i in range(4):
        k(f"v_cvt_pk_bf16_f32 v{124+i}, v{68+2*i}, v{69+2*i}")
    k("""
    v_permlane32_swap_b32 v122, v8
    v_permlane32_swap_b32 v123, v9
    s_nop 1
    """)
    stamp(k, 3); stamp2(k, 7)
    k(f"""
    s_waitcnt vmcnt(2)
    v_mfma_f32_16x16x32_bf16 v[64:67], v[56:59], v[124:127], 0
    v_mfma_f32_16x16x32_bf16 v[68:71], v[60:63], v[124:127], 0
    v_mfma_f32_16x16x16_bf16 v[64:67], v[14:15], v[120:121], v[64:67]
    v_mfma_f32_16x16x16_bf16 v[68:71], v[14:15], v[122:123], v[68:71]
    v_mov_b32 v7, s13
    s_mov_b64 exec, 1
    global_store_dword v12, v7, s[4:5] sc1
    s_mov_b64 exec, -1
    s_and_b32 s22, s13, 1
    s_lshl_b32 s22, s22, 19
    s_add_u32 s22, s22, s27
    v_add_u32 v18, s22, v2
    s_nop 4
    v_cvt_pk_bf16_f32 v72, v64, v65
    v_cvt_pk_bf16_f32 v73, v66, v67
    v_cvt_pk_bf16_f32 v74, v68, v69
    v_cvt_pk_bf16_f32 v75, v70, v71
    ds_write_b128 v22, v[72:75]
    s_waitcnt lgkmcnt(0)
    s_barrier
    """)
    for w in range(4):
        k(f"ds_read_b128 v[{56+4*w}:{59+4*w}], v5 offset:{LDS_OX + w*1024}")
    stamp(k, 4)
    accs = [8, 120, 124, 72]
    k("s_waitcnt lgkmcnt(0)")
    pend = 0
    for i in range(32):
        dtl, w = i // 4, i % 4
        if i >= NS:
            issued_after = min(32, i + NS) - (i + 1)
            k(f"s_waitcnt lgkmcnt({min(issued_after,15)})")
        sl = slots[i % NS]; d = accs[dtl % 4]
        c = "0" if w == 0 else f"v[{d}:{d+3}]"
        k(f"v_mfma_f32_16x16x32_bf16 v[{d}:{d+3}], v[{sl}:{sl+3}], v[{56+4*w}:{59+4*w}], {c}")
        if i + NS < 32:
            rd(i + NS)
        if w == 3 and dtl >= 1:
            emit_pstore(k, accs[(dtl-1) % 4], st)
    k("s_nop 7")
    emit_pstore(k, accs[3], st)
    stamp(k, 5)
    k(f"""
    s_add_u32 s25, s25, {32*8192}
    s_and_b32 s22, s13, 1
    s_lshl_b32 s22, s22, 19
    s_add_u32 s22, s22, s28            ; s28 = PRING + h*16384 + w*4096
    v_add_u32 v18, s22, v5
    """)
    Lp = k.newlab("redpoll")
    k.label(Lp)
    for i in range(4):
        k(f"global_load_dwordx4 v[{64+4*i}:{67+4*i}], v18, s[4:5] offset:{i*1024} sc1")
    k(f"""
    s_waitcnt vmcnt(0)
    v_max3_u32 v7, v64, v68, v72
    v_max_u32 v7, v7, v76
    v_cmp_eq_u32 vcc, -1, v7
    s_sub_u32 s40, s40, 1
    s_cbranch_scc1 {Ldead}
    s_cbranch_vccnz {Lp}
    """)
    stamp(k, 6)
    k(f"""
    v_pk_add_f32 v[64:65], v[64:65], v[68:69]
    v_pk_add_f32 v[66:67], v[66:67], v[70:71]
    v_pk_add_f32 v[72:73], v[72:73], v[76:77]
    v_pk_add_f32 v[74:75], v[74:75], v[78:79]
    v_pk_add_f32 v[64:65], v[64:65], v[72:73]
    v_pk_add_f32 v[66:67], v[66:67], v[74:75]
    s_nop 1
    v_add_f32_dpp v68, v64, v64 row_ror:8 row_mask:0xf bank_mask:0xf
    v_add_f32_dpp v69, v65, v65 row_ror:8 row_mask:0xf bank_mask:0xf
    v_add_f32_dpp v70, v66, v66 row_ror:8 row_mask:0xf bank_mask:0xf
    v_add_f32_dpp v71, v67, v67 row_ror:8 row_mask:0xf bank_mask:0xf
    s_nop 1
    v_permlane16_swap_b32 v68, v70
    v_permlane16_swap_b32 v69, v71
    s_nop 0
    v_add_f32 v64, v68, v70
    v_add_f32 v65, v69, v71
    v_mov_b32 v66, v64
    v_mov_b32 v67, v65
    s_nop 1
    v_permlane32_swap_b32 v64, v66
    v_permlane32_swap_b32 v65, v67
    s_nop 0
    v_add_f32 v64, v64, v66
    v_add_f32 v65, v65, v67
    v_cvt_pk_bf16_f32 v72, v64, v65
    v_min_u32 v72, 0xfffffffe, v72
    v_add_u32 v7, s29, v3
    s_mov_b32 exec_lo, 0x00ff00ff
    s_mov_b32 exec_hi, 0
    global_store_dword v7, v72, s[4:5]{st}
    v_mov_b32 v74, -1
    v_add_u32 v7, s34, v3
    global_store_dword v7, v74, s[4:5]{st}
    s_mov_b64 exec, -1
    v_mov_b32 v76, -1
    v_mov_b32 v77, -1
    v_mov_b32 v78, -1
    v_mov_b32 v79, -1
    """)
    for i in range(4):
        k(f"global_store_dwordx4 v18, v[76:79], s[4:5] offset:{i*1024}{st}")
    k(f"s_cmp_lg_u32 s12, 0\ns_cbranch_scc1 {Lnored}")
    if STAMP:
        stamp(k, 7)
        k("s_waitcnt lgkmcnt(0)")
        k(f"""
        s_lshl_b32 s22, s13, 6
        s_lshl_b32 s23, s10, 12
        s_add_u32 s22, s22, s23
        s_add_u32 s22, s22, {STAMPS}
        v_mov_b32 v7, s22
        """)
        for i in range(8):
            k(f"v_mov_b32 v8, s{44+2*i}\nglobal_store_dword v7, v8, s[4:5] offset:{4*i}")
    k.label(Lnored)
    k(f"""
    s_add_u32 s13, s13, 1
    s_add_u32 s24, s24, {32*4096}
    s_mov_b32 s34, s29
    s_add_u32 s20, s4, s29
    s_addc_u32 s21, s5, 0
    s_add_u32 s29, s29, 8192
    s_cmp_eq_u32 s29, {MRING + 3*8192}
    s_cselect_b32 s29, {MRING}, s29
    s_branch {Lloop}
    """)
    k.label(Llast)
    k(f"""
    ds_read_b128 v[120:123], v17
    global_store_dwordx2 v19, v[14:15], s[4:5] sc1
    s_lshl_b32 s22, s12, 10
    s_add_u32 s22, s22, s24
    v_add_u32 v18, s22, v5
    v_add_u32 v18, {KM_F}, v18
    s_waitcnt lgkmcnt(0)
    global_store_dwordx4 v18, v[120:123], s[4:5] sc1
    v_mov_b32 v7, 64
    s_waitcnt vmcnt(0)
    s_mov_b64 exec, 1
    global_store_dword v12, v7, s[4:5] sc1
    s_mov_b64 exec, -1
    """)
    k.label(Ldone)
    k.label(Ldead)
    k("s_endpgm")

def emit_pstore(k, d, st):
    k(f"v_min_u32 v{d}, 0xfffffffe, v{d}")
    k(f"""
    s_mov_b64 exec, s[30:31]
    global_store_dwordx4 v18, v[{d}:{d+3}], s[4:5]{st}
    s_mov_b64 exec, -1
    v_add_u32 v18, 16384, v18
    """)

def gen_chain():
    k = Kern("chain_kernel", vgpr=512, sgpr=64, accum=256)
    Lend, Lskip, Lpoll, Lgot, Lnotlast, Lslow, Lwr, Lcand, Lno, Lnoto, Lwork = [k.newlab() for _ in range(11)]
    k(f"""
    s_cmp_ge_u32 s2, 256
    s_cbranch_scc1 {Lend}
    s_load_dwordx2 s[4:5], s[0:1], {KA_WS}
    s_load_dwordx2 s[6:7], s[0:1], {KA_MEM0}
    s_load_dwordx2 s[8:9], s[0:1], {KA_DBG}
    s_getreg_b32 s14, hwreg(HW_REG_XCC_ID)
    s_and_b32 s14, s14, 7
    v_lshrrev_b32 v1, 6, v0
    s_nop 0
    v_readfirstlane_b32 s12, v1
    v_mov_b32 v10, {LDS_ROLE}
    s_waitcnt lgkmcnt(0)
    s_cmp_lg_u32 s12, 0
    s_cbranch_scc1 {Lskip}
    s_mov_b64 exec, 1
    s_lshl_b32 s15, s14, 2
    v_mov_b32 v1, s15
    v_mov_b32 v2, 1
    v_mov_b32 v3, 68
    global_atomic_add v4, v1, v2, s[8:9] sc0
    global_atomic_add v5, v3, v2, s[8:9] sc0
    s_waitcnt vmcnt(0)
    v_readfirstlane_b32 s16, v4
    v_readfirstlane_b32 s17, v5
    v_mov_b32 v3, 64
    s_add_u32 s18, s14, 1
    s_cmp_lg_u32 s16, 31
    s_cbranch_scc1 {Lnotlast}
    v_mov_b32 v6, s18
    v_mov_b32 v7, 0
    global_atomic_cmpswap v3, v[6:7], s[8:9]
    s_waitcnt vmcnt(0)
    """)
    k.label(Lnotlast)
    k(f"""
    s_mov_b32 s10, -1
    s_mov_b32 s11, 0
    s_cmp_lt_u32 s16, 32
    s_cbranch_scc1 {Lcand}
    s_cmp_lt_u32 s17, 32
    s_cbranch_scc0 {Lwr}
    """)
    k.label(Lcand)
    k("s_mov_b32 s19, 0")
    k.label(Lpoll)
    k(f"""
    global_load_dword v4, v3, s[8:9] sc1
    s_waitcnt vmcnt(0)
    v_readfirstlane_b32 s15, v4
    s_cmp_lg_u32 s15, 0
    s_cbranch_scc1 {Lgot}
    s_add_u32 s19, s19, 1
    s_cmp_lt_u32 s19, 20000
    s_cbranch_scc1 {Lpoll}
    v_mov_b32 v6, 0x100
    v_mov_b32 v7, 0
    global_atomic_cmpswap v3, v[6:7], s[8:9]
    s_waitcnt vmcnt(0)
    s_mov_b32 s19, 0
    s_branch {Lpoll}
    """)
    k.label(Lgot)
    k(f"""
    s_cmp_eq_u32 s15, s18
    s_cbranch_scc0 {Lno}
    s_cmp_lt_u32 s16, 32
    s_cbranch_scc0 {Lwr}
    s_mov_b32 s10, s16
    s_mov_b32 s11, 1
    s_branch {Lwr}
    """)
    k.label(Lno)
    k(f"""
    s_cmp_eq_u32 s15, 0x100
    s_cbranch_scc0 {Lwr}
    s_cmp_lt_u32 s17, 32
    s_cbranch_scc0 {Lwr}
    s_mov_b32 s10, s17
    """)
    k.label(Lwr)
    k(f"""
    v_mov_b32 v6, s10
    v_mov_b32 v7, s11
    ds_write_b64 v10, v[6:7]
    s_mov_b64 exec, -1
    """)
    k.label(Lskip)
    k(f"""
    s_waitcnt lgkmcnt(0)
    s_barrier
    ds_read_b64 v[6:7], v10
    s_waitcnt lgkmcnt(0)
    v_readfirstlane_b32 s10, v6
    v_readfirstlane_b32 s11, v7
    s_nop 3
    s_cmp_eq_u32 s10, -1
    s_cbranch_scc1 {Lwork}
    """)
    k(f"""
    v_and_b32 v1, 63, v0
    v_lshlrev_b32 v5, 4, v1            ; lane*16
    v_bfe_u32 v6, v0, 4, 2             ; g
    v_and_b32 v7, 15, v0               ; c
    v_add_u32 v4, 4096, v5
    v_and_b32 v8, 7, v7
    v_mul_u32_u24 v9, 1040, v8
    v_lshl_add_u32 v9, v6, 5, v9
    v_lshrrev_b32 v10, 3, v7
    v_lshl_add_u32 v9, v10, 4, v9
    v_mul_u32_u24 v21, 272, v8
    v_lshl_add_u32 v21, v6, 4, v21
    s_lshl_b32 s22, s12, 6
    s_add_u32 s23, s22, {KX_OFF}
    v_add_u32 v17, s23, v21
    v_mov_b32 v16, 0x4444
    v_mov_b32 v11, 0xeeee
    v_cmp_lt_u32 vcc, 7, v7
    s_nop 1
    v_cndmask_b32 v16, v16, v11, vcc
    v_lshrrev_b32 v10, 5, v1
    v_mul_u32_u24 v20, {KX_OFF}, v10
    v_bfe_u32 v10, v1, 4, 1
    v_mul_u32_u24 v10, 1088, v10
    v_add_u32 v20, v20, v10
    v_lshl_add_u32 v20, v7, 2, v20
    v_add_u32 v20, s22, v20
    s_mov_b32 s30, 0x00ff00ff
    s_mov_b32 s31, 0x00ff00ff
    s_mov_b32 s32, 0
    s_mov_b32 s33, -1
    v_and_b32 v2, 1, v7
    v_lshlrev_b32 v2, 2, v2
    v_add_u32 v2, v2, v6
    v_lshlrev_b32 v2, 4, v2
    v_bfe_u32 v10, v7, 1, 2
    v_lshl_add_u32 v2, v10, 12, v2
    v_bfe_u32 v3, v1, 2, 1
    s_lshl_b32 s22, s12, 1
    v_add_u32 v3, s22, v3
    v_lshlrev_b32 v3, 10, v3
    v_and_b32 v8, 3, v1
    v_lshl_add_u32 v3, v8, 3, v3
    v_bfe_u32 v8, v1, 4, 1
    v_lshl_add_u32 v3, v8, 2, v3
    s_lshl_b32 s22, s10, 5
    v_add_u32 v3, s22, v3
    s_lshl_b32 s22, s12, 11
    v_add_u32 v4, s22, v5
    s_lshl_b32 s22, s10, 7
    s_lshl_b32 s23, s12, 2
    s_add_u32 s22, s22, s23
    s_add_u32 s22, s22, {FLG}
    v_mov_b32 v12, s22
    s_mul_i32 s22, s12, 2080
    s_add_u32 s22, s22, {LDS_MX}
    v_add_u32 v13, s22, v5
    v_mov_b32 v1, v9
    s_lshl_b32 s22, s12, 10
    s_add_u32 s22, s22, {LDS_OX}
    v_add_u32 v22, s22, v5
    s_lshl_b32 s22, s12, 15
    s_add_u32 s22, s22, {LDS_WO}
    v_add_u32 v23, s22, v5
    ; scalars
    s_mov_b32 s13, 0
    s_lshl_b32 s24, s10, 12            ; (0*32+h)*4096
    s_lshl_b32 s25, s10, 13            ; (0*32+h)*8192
    s_lshl_b32 s27, s12, 17            ; 8w*32*512
    s_lshl_b32 s22, s10, 7
    s_add_u32 s27, s27, s22
    s_add_u32 s27, s27, {PRING}
    s_lshl_b32 s28, s10, 14
    s_lshl_b32 s22, s12, 12
    s_add_u32 s28, s28, s22
    s_add_u32 s28, s28, {PRING}
    s_mov_b32 s29, {MRING + 8192}
    s_mov_b32 s34, {MRING}
    s_mov_b32 s20, s6
    s_mov_b32 s21, s7
    s_mov_b32 s40, 0x200000
    s_mov_b32 s16, s4
    s_and_b32 s17, s5, 0xffff
    s_mov_b32 s18, 0x10000000
    s_mov_b32 s19, 0x00020000
    """)
    k(f"""
    s_lshl_b32 s22, s12, 20            ; 8w*128KB
    s_lshl_b32 s23, s10, 12
    s_add_u32 s22, s22, s23
    s_add_u32 s22, s22, {WO_F}
    v_add_u32 v8, s22, v5
    s_lshl_b32 s23, s12, 15
    """)
    for i in range(8):
        k(f"s_add_u32 s26, s23, {i*4096 + LDS_WO}\ns_mov_b32 m0, s26\ns_mov_b32 s26, {i*131072}")
        for w in range(4):
            k(f"buffer_load_dwordx4 v8, s[16:19], s26 offen offset:{w*1024} lds")
    jl = [0, 1, 8, 9, 16, 17]
    k(f"""
    s_mul_i32 s22, s10, {24*16384}
    s_lshl_b32 s23, s12, 15            ; 2w*16KB
    s_add_u32 s22, s22, s23
    v_add_u32 v8, s22, v5
    """)
    for jj in range(6):
        for q in range(4):
            k(f"v_add_u32 v9, {WQKVS_F + jl[jj]*16384 + q*4096}, v8")
            for r in range(4):
                k(f"global_load_dwordx4 {wreg(jj, q*4+r)}, v9, s[4:5] offset:{r*1024}")
    k(f"""
    s_lshl_b32 s35, s10, 2
    s_add_u32 s35, s35, {FLG + 8192}
    """)
    k(f"""
    s_waitcnt vmcnt(0)
    s_barrier
    s_cmp_eq_u32 s11, 0
    s_cbranch_scc1 {Lslow}
    """)
    chain_loop(k, True)
    k.label(Lslow)
    chain_loop(k, False)
    k.label(Lend)
    k("s_endpgm")
    k.label(Lwork)
    from k_worker import worker
    worker(k)
    return k, f"grid=(256,1,1) block=(256,1,1) lds={LDS_CHAIN}"
```

```python
from common import *

NST = 4
def gemm_setup(k):
    k(f"""
    s_load_dwordx2 s[4:5], s[0:1], {KA_WS}
    v_and_b32 v1, 63, v0
    v_lshrrev_b32 v4, 6, v0
    v_bfe_u32 v2, v0, 4, 2
    v_and_b32 v3, 15, v0
    s_nop 0
    v_readfirstlane_b32 s12, v4
    s_waitcnt lgkmcnt(0)
    s_mov_b32 s8, s4
    s_and_b32 s9, s5, 0xffff
    s_mov_b32 s10, 0x10000000
    s_mov_b32 s11, 0x00020000
    """)

def gemm_core(k, nk, opt, sA, strideA, sB, strideB, relB=None, halfB=None, tile28=False, sc=''):
    if relB is None:
        relB = [i*strideB for i in range(4)]
        halfB = 4*strideB
    relA = [i*strideA for i in range(4)]
    k(f"""
    s_and_b32 s13, s12, 1
    s_mul_i32 s14, s13, {4*strideA}
    s_add_u32 s14, s14, s{sA}
    s_mul_i32 s15, s13, {halfB}
    s_add_u32 s15, s15, s{sB}
    s_cmp_lt_u32 s12, 2
    s_cselect_b32 s14, s14, s15
    v_lshlrev_b32 v8, 4, v1            ; lane*16
    v_add_u32 v4, s14, v8
    """)
    for i in range(1, 4):
        k(f"""
        s_mov_b32 s16, {relA[i] - i*1024}
        s_mov_b32 s17, {relB[i] - i*1024}
        s_cselect_b32 s16, s16, s17
        v_add_u32 v{4+i}, s16, v4
        """)
    k(f"""
    s_lshl_b32 s17, s12, 12
    s_lshr_b32 s18, s12, 1             ; wm
    s_lshl_b32 s18, s18, 12
    v_add_u32 v9, s18, v8
    s_lshl_b32 s19, s13, 12
    v_add_u32 v10, s19, v8
    v_add_u32 v10, 8192, v10
    """)
    if tile28:
        k("""
        s_lshl_b32 s18, s12, 11
        v_add_u32 v9, s18, v8
        v_add_u32 v10, 8192, v8
        """)
    def issue(st_k):
        slot = st_k % NST
        k(f"s_add_u32 s13, s17, {slot*16384}\ns_mov_b32 m0, s13\ns_mov_b32 s13, {st_k*1024}")
        for i in range(4):
            k(f"buffer_load_dwordx4 v{4+i}, s[8:11], s13 offen offset:{i*1024}{sc} lds")
    for i in range(64):
        k(f"v_mov_b32 v{64+i}, 0")
    for st in range(min(NST-1, nk)):
        issue(st)
    opts = opt if isinstance(opt, list) else [opt]*4
    for kk in range(nk):
        rem = min(nk-1, kk+NST-2) - kk
        k(f"s_waitcnt vmcnt({4*rem})")
        k("s_barrier")
        if kk + NST - 1 < nk:
            issue(kk + NST - 1)
        slot = kk % NST
        if tile28:
            for a in range(2):
                k(f"ds_read_b128 v[{24+4*a}:{27+4*a}], v9 offset:{slot*16384 + a*1024}")
            for b in range(8):
                k(f"ds_read_b128 v[{32+4*b}:{35+4*b}], v10 offset:{slot*16384 + b*1024}")
            k("s_waitcnt lgkmcnt(0)")
            for a in range(2):
                for b in range(8):
                    d = 64 + (a*8+b)*4
                    k(f"v_mfma_f32_16x16x32_bf16 v[{d}:{d+3}], v[{32+4*b}:{35+4*b}], v[{24+4*a}:{27+4*a}], v[{d}:{d+3}]")
            continue
        for a in range(4):
            k(f"ds_read_b128 v[{32+4*a}:{35+4*a}], v9 offset:{slot*16384 + a*1024}")
        for b in range(4):
            k(f"ds_read_b128 v[{48+4*b}:{51+4*b}], v10 offset:{slot*16384 + b*1024}")
        k("s_waitcnt lgkmcnt(0)")
        for a in range(4):
            for b in range(4):
                d = 64 + (a*4+b)*4
                A = f"v[{32+4*a}:{35+4*a}]"; B = f"v[{48+4*b}:{51+4*b}]"
                if opts[b] == 1:
                    k(f"v_mfma_f32_16x16x32_bf16 v[{d}:{d+3}], {A}, {B}, v[{d}:{d+3}]")
                else:
                    k(f"v_mfma_f32_16x16x32_bf16 v[{d}:{d+3}], {B}, {A}, v[{d}:{d+3}]")
    k("s_nop 7\ns_nop 1")

def g1_body(k, Ldone):
    Lend = Ldone; Lv = k.newlab()
    k(f"""
    s_lshl_b32 s24, s20, 17
    s_add_u32 s24, s24, {XN_F}
    s_mul_i32 s25, s23, 24
    s_lshl_b32 s26, s22, 3
    s_add_u32 s25, s25, s26
    s_lshl_b32 s25, s25, 14
    s_add_u32 s25, s25, {WQKV_F}
    s_cmp_eq_u32 s22, 2
    s_cbranch_scc1 {Lv}
    """)
    gemm_core(k, 16, 2, 24, 16384, 25, 16384)
    k(f"""
    s_mov_b32 s26, {Q_F}
    s_mov_b32 s27, {K_F}
    s_cmp_eq_u32 s22, 0
    s_cselect_b32 s26, s26, s27
    s_lshr_b32 s27, s12, 1             ; wm
    s_and_b32 s28, s12, 1              ; wn
    s_lshl_b32 s29, s20, 2
    s_lshl_b32 s30, s27, 1
    s_add_u32 s29, s29, s30
    s_lshl_b32 s29, s29, 5
    s_add_u32 s29, s29, s23            ; seg0*32+h
    s_lshl_b32 s29, s29, 13            ; *8KB
    s_add_u32 s26, s26, s29
    s_lshl_b32 s28, s28, 11            ; 2wn*1024
    s_add_u32 s26, s26, s28
    v_lshlrev_b32 v4, 4, v1
    v_add_u32 v4, s26, v4
    v_add_u32 v5, 4096, v4
    v_add_u32 v6, {32*8192}, v4
    v_add_u32 v7, 4096, v6
    """)
    for a in range(4):
        for p in range(2):
            d0 = 64 + (a*4+2*p)*4; d1 = d0+4
            t = 32 + 4*((a*2+p) % 4)
            k(f"""
            v_cvt_pk_bf16_f32 v{t}, v{d0}, v{d1}
            v_cvt_pk_bf16_f32 v{t+1}, v{d0+1}, v{d1+1}
            v_cvt_pk_bf16_f32 v{t+2}, v{d0+2}, v{d1+2}
            v_cvt_pk_bf16_f32 v{t+3}, v{d0+3}, v{d1+3}
            global_store_dwordx4 v{4 + a}, v[{t}:{t+3}], s[4:5] offset:{p*1024} sc1
            """)
    k(f"s_branch {Lend}")
    k.label(Lv)
    gemm_core(k, 16, 1, 24, 16384, 25, 16384)
    k(f"""
    s_lshr_b32 s27, s12, 1
    s_and_b32 s28, s12, 1
    s_lshl_b32 s29, s20, 2
    s_lshl_b32 s30, s27, 1
    s_add_u32 s29, s29, s30
    s_lshl_b32 s29, s29, 5
    s_add_u32 s29, s29, s23
    s_lshl_b32 s29, s29, 13
    s_add_u32 s26, s29, {V_F}
    s_lshl_b32 s28, s28, 12            ; 4wn*1024
    s_add_u32 s26, s26, s28
    v_lshlrev_b32 v4, 4, v1
    v_add_u32 v4, s26, v4
    v_add_u32 v5, {32*8192}, v4
    """)
    for ap in range(2):
        for b in range(4):
            d0 = 64 + ((2*ap)*4+b)*4; d1 = 64 + ((2*ap+1)*4+b)*4
            t = 32 + 4*b
            k(f"""
            v_cvt_pk_bf16_f32 v{t}, v{d0}, v{d0+1}
            v_cvt_pk_bf16_f32 v{t+1}, v{d0+2}, v{d0+3}
            v_cvt_pk_bf16_f32 v{t+2}, v{d1}, v{d1+1}
            v_cvt_pk_bf16_f32 v{t+3}, v{d1+2}, v{d1+3}
            global_store_dwordx4 v{4+ap}, v[{t}:{t+3}], s[4:5] offset:{b*1024} sc1
            """)


def gen_g2():
    k = Kern("g2_kernel", vgpr=128, sgpr=40)
    Lend = k.newlab()
    k(f"s_cmp_ge_u32 s2, 256\ns_cbranch_scc1 {Lend}")
    gemm_setup(k)
    k(f"""
    s_and_b32 s20, s2, 15              ; tb
    s_bfe_u32 s21, s2, 0x20004
    s_lshr_b32 s22, s2, 6              ; ks
    s_lshl_b32 s24, s20, 20
    s_lshl_b32 s26, s22, 15
    s_add_u32 s24, s24, s26
    s_add_u32 s24, s24, {O_F}
    s_lshl_b32 s25, s21, 20
    s_add_u32 s25, s25, s26
    s_add_u32 s25, s25, {WO_F}
    """)
    g2_body(k)
    k.label(Lend)
    k("s_endpgm")
    return k, "grid=(256,1,1) block=(256,1,1) lds=65536"

def g2_body(k, sc=''):
    k(f"""
    s_lshl_b32 s24, s20, 20
    s_lshl_b32 s26, s22, 15
    s_add_u32 s24, s24, s26
    s_add_u32 s24, s24, {O_F}
    s_lshl_b32 s25, s21, 20
    s_add_u32 s25, s25, s26
    s_add_u32 s25, s25, {WO_F}
    """)
    gemm_core(k, 32, 2, 24, 131072, 25, 131072, sc=sc)
    k(f"""
    s_lshr_b32 s27, s12, 1
    s_and_b32 s28, s12, 1
    s_lshl_b32 s29, s20, 7
    s_lshl_b32 s30, s27, 6
    s_add_u32 s29, s29, s30
    v_add_u32 v4, s29, v3              ; token (a=0)
    v_lshlrev_b32 v4, 11, v4
    s_lshl_b32 s30, s21, 9             ; db*128*4
    s_lshl_b32 s31, s28, 8             ; wn*64*4
    s_add_u32 s30, s30, s31
    s_lshl_b32 s31, s22, 22
    s_add_u32 s30, s30, s31
    s_add_u32 s30, s30, {PART}
    v_add_u32 v4, s30, v4
    v_lshl_add_u32 v4, v2, 4, v4       ; + g*16
    """)
    for a in range(4):
        for b in range(4):
            d = 64 + (a*4+b)*4
            k(f"global_store_dwordx4 v4, v[{d}:{d+3}], s[4:5] offset:{b*64}")
        if a < 3:
            k(f"v_add_u32 v4, {16*2048}, v4")
```

```python
from common import *

def transpose_store(k, dst_v):
    k("s_mov_b32 s20, 0x05040100\ns_mov_b32 s21, 0x07060302")
    for mm in range(4):
        for p in range(4):
            r0 = 16 + 4*(2*p) + mm
            r1 = 16 + 4*(2*p+1) + mm
            k(f"v_perm_b32 v{48+4*(2*mm)+p}, v{r1}, v{r0}, s20")
            k(f"v_perm_b32 v{48+4*(2*mm+1)+p}, v{r1}, v{r0}, s21")
    for m in range(8):
        k(f"global_store_dwordx4 v{dst_v}, v[{48+4*m}:{48+4*m+3}], s[4:5] offset:{m*16}")

def load_rows(k, src_s, off_v, stride, perm):
    for i in range(8):
        if perm == 'sp':
            ro = [0,1,8,9,2,3,10,11][i]
        else:
            ro = ((i & 3) + 16*(i >> 2)) if perm else i
        k(f"v_add_u32 v{8+i}, {ro*stride}, v{off_v}" if ro else f"v_mov_b32 v{8+i}, v{off_v}")
    for i in range(8):
        k(f"global_load_dwordx4 v[{16+4*i}:{16+4*i+3}], v{8+i}, s[{src_s}:{src_s+1}]")
    k("s_waitcnt vmcnt(0)")

def gen_prep():
    k = Kern("prep_kernel", vgpr=80, sgpr=32)
    k(f"""
    s_load_dwordx2 s[4:5], s[0:1], {KA_WS}
    s_load_dwordx4 s[8:11], s[0:1], {KA_WQ}
    s_load_dwordx4 s[12:15], s[0:1], {KA_WV}
    s_load_dwordx4 s[16:19], s[0:1], {KA_BWQKV}
    s_waitcnt lgkmcnt(0)
    """)
    Lwo, Lbq, Lbo, Lend, Lq, Lsp = [k.newlab() for _ in range(6)]
    k(f"""
    s_cmp_ge_u32 s2, 976
    s_cbranch_scc1 {Lend}
    s_cmp_ge_u32 s2, 592
    s_cbranch_scc1 {Lsp}
    s_cmp_ge_u32 s2, 576
    s_cbranch_scc1 {Lbo}
    s_cmp_ge_u32 s2, 512
    s_cbranch_scc1 {Lbq}
    s_cmp_ge_u32 s2, 384
    s_cbranch_scc1 {Lwo}
    """)
    k(f"""
    s_lshr_b32 s22, s2, 7          ; which 0..2
    s_and_b32 s23, s2, 127
    s_mov_b32 s6, s8
    s_mov_b32 s7, s9
    s_cmp_eq_u32 s22, 1
    s_cselect_b32 s6, s10, s6
    s_cselect_b32 s7, s11, s7
    s_cmp_eq_u32 s22, 2
    s_cselect_b32 s6, s12, s6
    s_cselect_b32 s7, s13, s7
    s_lshl_b32 s24, s23, 8
    v_add_u32 v1, s24, v0          ; tau
    v_and_b32 v2, 511, v1          ; octet
    v_lshrrev_b32 v3, 9, v1        ; kg
    v_lshlrev_b32 v4, 16, v3
    v_lshl_add_u32 v4, v2, 4, v4   ; + octet*16
    """)
    load_rows(k, 6, 4, 8192, False)
    k(f"""
    v_lshrrev_b32 v5, 4, v2        ; h = octet>>4
    v_mul_u32_u24 v5, 24, v5
    v_bfe_u32 v6, v2, 1, 3         ; e0>>4
    v_add_u32 v5, v5, v6
    s_lshl_b32 s25, s22, 3
    v_add_u32 v5, s25, v5          ; h*24+j
    v_lshlrev_b32 v5, 4, v5
    v_lshrrev_b32 v6, 2, v3        ; kk
    v_add_u32 v5, v5, v6
    v_lshlrev_b32 v5, 6, v5        ; *64
    v_and_b32 v6, 3, v3
    v_lshl_add_u32 v5, v6, 4, v5   ; + g*16
    v_and_b32 v6, 1, v2
    v_lshl_add_u32 v5, v6, 3, v5   ; + c0
    v_lshlrev_b32 v5, 4, v5
    """)
    if WQKV_F: k(f"v_add_u32 v5, {WQKV_F}, v5")
    transpose_store(k, 5)
    k(f"s_branch {Lend}")
    k.label(Lwo)
    k(f"""
    s_sub_u32 s23, s2, 384
    s_lshl_b32 s24, s23, 8
    v_add_u32 v1, s24, v0          ; tau
    v_and_b32 v2, 63, v1           ; octet (d)
    v_lshrrev_b32 v3, 6, v1        ; hwg
    v_lshrrev_b32 v4, 2, v3        ; h*4+w
    v_lshlrev_b32 v4, 5, v4
    v_and_b32 v6, 3, v3
    v_lshl_add_u32 v4, v6, 2, v4   ; +4g
    v_lshlrev_b32 v4, 10, v4       ; *1024 B
    v_lshl_add_u32 v4, v2, 4, v4
    """)
    load_rows(k, 14, 4, 1024, True)
    k(f"""
    v_lshrrev_b32 v5, 1, v2        ; dt
    v_lshlrev_b32 v5, 7, v5        ; dt*128
    v_lshrrev_b32 v6, 2, v3        ; h*4+w
    v_add_u32 v5, v5, v6
    v_lshlrev_b32 v5, 6, v5
    v_and_b32 v6, 3, v3
    v_lshl_add_u32 v5, v6, 4, v5
    v_and_b32 v6, 1, v2
    v_lshl_add_u32 v5, v6, 3, v5
    v_lshlrev_b32 v5, 4, v5
    v_add_u32 v5, {WO_F}, v5
    """)
    transpose_store(k, 5)
    k(f"s_branch {Lend}")
    k.label(Lbq)
    k(f"""
    s_sub_u32 s23, s2, 512         ; kg
    v_cmp_gt_u32 vcc, 192, v0
    s_and_saveexec_b64 s[26:27], vcc
    s_cbranch_execz {Lend}
    s_mul_i32 s24, s23, {8*3072}
    v_lshlrev_b32 v4, 4, v0
    v_add_u32 v4, s24, v4
    """)
    load_rows(k, 16, 4, 3072, False)
    k(f"""
    v_lshrrev_b32 v5, 1, v0        ; j
    v_lshlrev_b32 v5, 4, v5
    s_lshr_b32 s25, s23, 2
    v_add_u32 v5, s25, v5
    v_lshlrev_b32 v5, 6, v5
    s_and_b32 s25, s23, 3
    s_lshl_b32 s25, s25, 4
    v_add_u32 v5, s25, v5
    v_and_b32 v6, 1, v0
    v_lshl_add_u32 v5, v6, 3, v5
    v_lshlrev_b32 v5, 4, v5
    v_add_u32 v5, {BQKV_F}, v5
    """)
    transpose_store(k, 5)
    k(f"s_branch {Lend}")
    k.label(Lbo)
    k(f"""
    s_sub_u32 s23, s2, 576
    s_lshl_b32 s24, s23, 8
    v_add_u32 v1, s24, v0
    v_and_b32 v2, 63, v1           ; octet
    v_lshrrev_b32 v3, 6, v1        ; kg
    v_lshrrev_b32 v4, 2, v3
    v_lshlrev_b32 v4, 5, v4
    v_and_b32 v6, 3, v3
    v_lshl_add_u32 v4, v6, 2, v4
    v_lshlrev_b32 v4, 10, v4
    v_lshl_add_u32 v4, v2, 4, v4
    """)
    load_rows(k, 18, 4, 1024, True)
    k(f"""
    v_lshrrev_b32 v5, 1, v2        ; dt
    v_lshlrev_b32 v5, 4, v5
    v_lshrrev_b32 v6, 2, v3
    v_add_u32 v5, v5, v6
    v_lshlrev_b32 v5, 6, v5
    v_and_b32 v6, 3, v3
    v_lshl_add_u32 v5, v6, 4, v5
    v_and_b32 v6, 1, v2
    v_lshl_add_u32 v5, v6, 3, v5
    v_lshlrev_b32 v5, 4, v5
    v_add_u32 v5, {BWO_F}, v5
    """)
    transpose_store(k, 5)
    k(f"s_branch {Lend}")
    k.label(Lsp)
    k(f"""
    s_sub_u32 s26, s2, 592
    s_lshr_b32 s22, s26, 7
    s_and_b32 s23, s26, 127
    s_mov_b32 s6, s8
    s_mov_b32 s7, s9
    s_cmp_eq_u32 s22, 1
    s_cselect_b32 s6, s10, s6
    s_cselect_b32 s7, s11, s7
    s_cmp_eq_u32 s22, 2
    s_cselect_b32 s6, s12, s6
    s_cselect_b32 s7, s13, s7
    s_lshl_b32 s24, s23, 8
    v_add_u32 v1, s24, v0          ; tau
    v_and_b32 v2, 511, v1          ; octet
    v_lshrrev_b32 v3, 9, v1
    v_lshrrev_b32 v4, 1, v3
    v_lshlrev_b32 v4, 4, v4
    v_and_b32 v6, 1, v3
    v_lshl_add_u32 v4, v6, 2, v4
    v_lshlrev_b32 v4, 13, v4
    v_lshl_add_u32 v4, v2, 4, v4
    """)
    load_rows(k, 6, 4, 8192, 'sp')
    k(f"""
    v_lshrrev_b32 v5, 4, v2
    v_mul_u32_u24 v5, 24, v5
    v_bfe_u32 v6, v2, 1, 3
    v_add_u32 v5, v5, v6
    s_lshl_b32 s25, s22, 3
    v_add_u32 v5, s25, v5
    v_lshlrev_b32 v5, 4, v5
    v_lshrrev_b32 v6, 2, v3
    v_add_u32 v5, v5, v6
    v_lshlrev_b32 v5, 6, v5
    v_and_b32 v6, 3, v3
    v_lshl_add_u32 v5, v6, 4, v5
    v_and_b32 v6, 1, v2
    v_lshl_add_u32 v5, v6, 3, v5
    v_lshlrev_b32 v5, 4, v5
    v_add_u32 v5, {WQKVS_F}, v5
    """)
    transpose_store(k, 5)
    k.label(Lend)
    k("s_endpgm")
    return k, "grid=(976,1,1) block=(256,1,1) lds=0"

def gen_fill():
    k = Kern("fill_kernel", vgpr=16, sgpr=16)
    Lend = k.newlab(); Lr = k.newlab()
    k(f"""
    s_load_dwordx2 s[4:5], s[0:1], {KA_WS}
    s_cmp_ge_u32 s2, 65
    s_cbranch_scc1 {Lend}
    v_mov_b32 v4, -1
    v_mov_b32 v5, -1
    v_mov_b32 v6, -1
    v_mov_b32 v7, -1
    s_lshl_b32 s6, s2, 14
    v_lshlrev_b32 v1, 4, v0
    v_add_u32 v1, s6, v1
    v_add_u32 v1, {PRING}, v1
    s_waitcnt lgkmcnt(0)
    """)
    for i in range(4):
        k(f"global_store_dwordx4 v1, v[4:7], s[4:5]")
        k(f"v_add_u32 v1, 4096, v1")
    k(f"""
    s_cmp_eq_u32 s2, 64
    s_cbranch_scc0 {Lend}
    """)
    for i in range(2):
        k(f"global_store_dwordx4 v1, v[4:7], s[4:5]")
        k(f"v_add_u32 v1, 4096, v1")
    k(f"""
    v_mov_b32 v8, 0
    v_mov_b32 v9, 0
    v_mov_b32 v10, 0
    v_mov_b32 v11, 0
    v_lshlrev_b32 v1, 4, v0
    v_add_u32 v1, {FLG}, v1
    global_store_dwordx4 v1, v[8:11], s[4:5]
    global_store_dwordx4 v1, v[8:11], s[4:5] offset:4080
    v_add_u32 v1, 8176, v1
    global_store_dwordx4 v1, v[8:11], s[4:5]
    """)
    k.label(Lend)
    k("s_endpgm")
    assert MRING == PRING + 0x100000
    return k, "grid=(65,1,1) block=(256,1,1) lds=0"
```

```python
from common import *
from k_gemm import gemm_core, g2_body, g1_body
from k_attn import ta_body

LDS_Q = 65536 + 64

def worker(k):
    Lnext, Lexit, Lt2, Lskip, Lp1, Lp2, Ls2, Ls3, Lkv, Lkvd = [k.newlab("w") for _ in range(10)]
    k(f"""
    s_mov_b32 s36, s8
    s_mov_b32 s37, s9                  ; s[36:37] = dbg
    v_and_b32 v1, 63, v0
    v_bfe_u32 v2, v0, 4, 2
    v_and_b32 v3, 15, v0
    s_mov_b32 s8, s4
    s_and_b32 s9, s5, 0xffff
    s_mov_b32 s10, 0x10000000
    s_mov_b32 s11, 0x00020000
    v_mov_b32 v200, {LDS_Q}
    """)
    k.label(Lnext)
    k(f"""
    s_barrier
    s_cmp_lg_u32 s12, 0
    s_cbranch_scc1 {Lskip}
    s_mov_b64 exec, 1
    v_mov_b32 v6, 128
    v_mov_b32 v7, 1
    global_atomic_add v6, v6, v7, s[36:37] sc0
    s_waitcnt vmcnt(0)
    ds_write_b32 v200, v6
    s_mov_b64 exec, -1
    """)
    k.label(Lskip)
    k(f"""
    s_waitcnt lgkmcnt(0)
    s_barrier
    ds_read_b32 v6, v200
    s_waitcnt lgkmcnt(0)
    v_readfirstlane_b32 s38, v6
    s_nop 3
    s_cmp_ge_u32 s38, 1792
    s_cbranch_scc1 {Lexit}
    s_cmp_lt_u32 s38, 1024
    s_cbranch_scc1 {Lkv}
    s_sub_u32 s38, s38, 1024
    s_mul_i32 s20, s38, 43691
    s_lshr_b32 s20, s20, 21            ; tb
    s_mov_b32 s41, s20
    s_mov_b32 s43, 0
    s_mul_i32 s21, s20, 48
    s_sub_u32 s39, s38, s21            ; idx
    s_cmp_ge_u32 s39, 32
    s_cbranch_scc1 {Lt2}
    s_lshl_b32 s24, s20, 17
    s_add_u32 s24, s24, {XN_F}
    s_mul_i32 s25, s39, {24*16384}
    s_add_u32 s25, s25, {WQKV_F}
    """)
    gemm_core(k, 16, 2, 24, 16384, 25, 16384, tile28=True)
    for tq in range(2):
        for w in range(4):
            d0 = 64 + (tq*8 + 2*w)*4; d1 = d0 + 4
            t = 16 + (tq*4+w)*4
            for r in range(4):
                k(f"v_cvt_pk_bf16_f32 v{t+r}, v{d0+r}, v{d1+r}")
    k(f"""
    s_lshl_b32 s13, s20, 2
    s_add_u32 s13, s13, s12            ; seg
    s_lshl_b32 s14, s39, 7
    s_add_u32 s14, s14, {FLG}
    v_mov_b32 v6, s14
    """)
    k.label(Lp1)
    k(f"""
    global_load_dwordx4 v[8:11], v6, s[4:5] sc1
    s_waitcnt vmcnt(0)
    v_min3_u32 v8, v8, v9, v10
    v_min_u32 v8, v8, v11
    s_nop 0
    v_readfirstlane_b32 s15, v8
    s_nop 3
    s_cmp_gt_u32 s15, s13
    s_cbranch_scc1 {Ls2}
    s_add_u32 s43, s43, 1
    s_cmp_gt_u32 s43, 0x80000
    s_cbranch_scc1 {Ls2}
    s_sleep 12
    s_sub_u32 s15, s13, s15
    s_cmp_lt_u32 s15, 2
    s_cbranch_scc1 {Lp1}
    s_sleep 100
    s_branch {Lp1}
    """)
    k.label(Ls2)
    k(f"""
    s_lshl_b32 s13, s13, 5
    s_add_u32 s13, s13, s39            ; seg*32+h
    v_lshlrev_b32 v5, 4, v1
    """)
    ta_body(k, True)
    k(f"""
    s_waitcnt vmcnt(0)
    s_barrier
    s_cmp_lg_u32 s12, 0
    s_cbranch_scc1 {Lnext}
    s_lshl_b32 s14, s41, 2
    s_lshr_b32 s15, s39, 3
    s_add_u32 s14, s14, s15
    s_lshl_b32 s14, s14, 6
    s_add_u32 s14, s14, {FLG + 4096}
    s_mov_b64 exec, 1
    v_mov_b32 v6, s14
    v_mov_b32 v7, 1
    global_atomic_add v6, v7, s[4:5] sc1
    s_mov_b64 exec, -1
    s_branch {Lnext}
    """)
    k.label(Lt2)
    k(f"""
    s_sub_u32 s39, s39, 32
    s_and_b32 s21, s39, 3              ; db
    s_lshr_b32 s22, s39, 2             ; ks
    s_lshl_b32 s14, s20, 2
    s_add_u32 s14, s14, s22
    s_lshl_b32 s14, s14, 6
    s_add_u32 s14, s14, {FLG + 4096}
    v_mov_b32 v6, s14
    """)
    k.label(Lp2)
    k(f"""
    global_load_dword v8, v6, s[4:5] sc1
    s_waitcnt vmcnt(0)
    v_readfirstlane_b32 s15, v8
    s_nop 3
    s_cmp_ge_u32 s15, 8
    s_cbranch_scc1 {Ls3}
    s_add_u32 s43, s43, 1
    s_cmp_gt_u32 s43, 0x80000
    s_cbranch_scc1 {Ls3}
    s_sleep 20
    s_branch {Lp2}
    """)
    k.label(Ls3)
    k("s_barrier")
    g2_body(k, sc=" sc1")
    k(f"s_branch {Lnext}")
    k.label(Lkv)
    k(f"""
    s_lshr_b32 s20, s38, 6             ; tb
    s_and_b32 s23, s38, 31             ; h
    s_bfe_u32 s22, s38, 0x10005
    s_add_u32 s22, s22, 1              ; which
    s_lshl_b32 s41, s20, 5
    s_add_u32 s41, s41, s23
    """)
    g1_body(k, Lkvd)
    k.label(Lkvd)
    k(f"""
    s_waitcnt vmcnt(0)
    s_barrier
    s_cmp_lg_u32 s12, 0
    s_cbranch_scc1 {Lnext}
    s_lshl_b32 s14, s41, 2
    s_add_u32 s14, s14, {FLG + 8192}
    s_mov_b64 exec, 1
    v_mov_b32 v6, s14
    v_mov_b32 v7, 1
    global_atomic_add v6, v7, s[4:5] sc1
    s_mov_b64 exec, -1
    s_branch {Lnext}
    """)
    k.label(Lexit)
    k("s_endpgm")
```

```python
import sys
from common import *
from k_prep import gen_prep, gen_fill
from k_ln import gen_ln
from k_gemm import gen_g2
from k_chain import gen_chain
from k_attn import gen_ta
from k_b import gen_g3, gen_kvred, gen_b2

HDR = open("interleave_layers__memory_aug_recurrent_mem_tr__linear_attn_block__prompt.s.ref").read().split("\n")
hdr = [l for l in HDR if l.startswith(";") and "@launch" not in l and "Override" not in l and "grid=ceil" not in l]

ks = {}
def reg(kk):
    k, launch = kk
    ks[k.name] = (k, launch)
    return k.name
prep = reg(gen_prep()); fill = reg(gen_fill())
ln0 = reg(gen_ln("ln0_kernel", 'input'))
ln1 = reg(gen_ln("ln1_kernel", 'part', None, X1))
ln3 = reg(gen_ln("ln3_kernel", 'part', X2, X3))
g2 = reg(gen_g2()); ch = reg(gen_chain()); ta = reg(gen_ta())
g3 = reg(gen_g3()); kvr = reg(gen_kvred())
b2a = reg(gen_b2("b2a_kernel", X1, X2, True))
b2b = reg(gen_b2("b2b_kernel", X3, None, False))
order = [prep, fill, ln0, ch, ln1, g3, kvr, b2a, fill, ch, ln3, g3, kvr, b2b]
del ks[ta]; del ks[g2]
if len(sys.argv) > 2:
    order = order[:int(sys.argv[2])]
out = "\n".join(hdr) + "\n"
for n in order:
    out += f"; @launch kernel={n} {ks[n][1]}\n"
out += '.amdgcn_target "amdgcn-amd-amdhsa--gfx950"\n.text\n'
for n,(k,_) in ks.items():
    out += k.text()
out += '.section .rodata,"a"\n'
for n,(k,_) in ks.items():
    out += k.desc()
open(sys.argv[1], "w").write(out)
print("written", len(out))
```

```python
S_, D_, H_, DH_, M_, SEG_, NSEG_ = 2048, 512, 32, 128, 8, 32, 64

KA_X, KA_MEM0, KA_WQ, KA_WK, KA_WV, KA_WO, KA_SEG, KA_BX, KA_BWQKV, KA_BWO, KA_OUT, KA_DBG, KA_WS = [8*i for i in range(13)]

WQKV_F = 0x0000000
WO_F   = 0x0C00000
BQKV_F = 0x1000000
BWO_F  = 0x1180000
XN_F   = 0x1200000
Q_F    = 0x1400000
K_F    = 0x2400000
V_F    = 0x3400000
KM_F   = 0x4400000
VM_F   = 0x4C00000
O_F    = 0x5400000
PART   = 0x6400000
X1     = 0x7400000
X2     = 0x7600000
X3     = 0x7800000
PRING  = 0x7A00000
MRING  = 0x7B00000
PQ_F   = 0x7C00000
KVP    = 0x7E00000
KVF    = 0x8000000
WQKVS_F = 0x8800000
FLG = 0x7B08000
STAMPS = 0xA000000

class Kern:
    def __init__(self, name, vgpr=128, sgpr=96, accum=None, lds=0):
        self.name = name
        self.lines = []
        self.vgpr = vgpr
        self.sgpr = sgpr
        self.accum = accum
        self.lab = 0
    def __call__(self, s):
        for l in s.strip("\n").split("\n"):
            l = l.strip()
            if l:
                self.lines.append("    " + l)
    def label(self, l):
        self.lines.append(f"{l}:")
    def newlab(self, base="L"):
        self.lab += 1
        return f"{base}_{self.name}_{self.lab}"
    def text(self):
        hdr = f".globl {self.name}\n.p2align 8\n.type {self.name},@function\n{self.name}:\n"
        return hdr + "\n".join(self.lines) + "\n"
    def desc(self):
        acc = self.accum if self.accum is not None else ((self.vgpr + 3)//4)*4
        return f""".p2align 6
.amdhsa_kernel {self.name}
  .amdhsa_next_free_vgpr {self.vgpr}
  .amdhsa_next_free_sgpr {self.sgpr}
  .amdhsa_accum_offset {acc}
  .amdhsa_group_segment_fixed_size 0
  .amdhsa_kernarg_size 104
  .amdhsa_user_sgpr_count 2
  .amdhsa_user_sgpr_kernarg_segment_ptr 1
  .amdhsa_system_sgpr_workgroup_id_x 1
.end_amdhsa_kernel
"""

def vr(b, n=1):
    return f"v{b}" if n == 1 else f"v[{b}:{b+n-1}]"
def ar(b, n=1):
    return f"a{b}" if n == 1 else f"a[{b}:{b+n-1}]"
def sr(b, n=1):
    return f"s{b}" if n == 1 else f"s[{b}:{b+n-1}]"

def merge(name, parts, lds):
    k = Kern(name, vgpr=max(p.vgpr for p,_ in parts), sgpr=max(p.sgpr for p,_ in parts))
    base = 0
    labs = []
    for i,(p,n) in enumerate(parts):
        l = f"M_{name}_{i}"
        labs.append((l, base))
        base += n
    tot = base
    k(f"s_cmp_ge_u32 s2, {tot}\ns_cbranch_scc1 M_{name}_end")
    for i in range(len(parts)-1, 0, -1):
        k(f"s_cmp_ge_u32 s2, {labs[i][1]}\ns_cbranch_scc1 {labs[i][0]}")
    for i,(p,n) in enumerate(parts):
        k.label(labs[i][0])
        if labs[i][1]:
            k(f"s_sub_u32 s2, s2, {labs[i][1]}")
        k.lines += p.lines
    k.label(f"M_{name}_end")
    k("s_endpgm")
    return k, f"grid=({tot},1,1) block=(256,1,1) lds={lds}"
```

```python
from common import *
from k_ln import xlane_sum_g, xlane_max_g

LDS_SX = 0
LDS_OX = LDS_SX + 12288
LDS_ROLE = LDS_OX + 4096
LDS_MX = 17408
LDS_WO = LDS_MX + 8*1040 + 64
LDS_CHAIN = LDS_WO + 131072
import os
STAMP = os.environ.get("STAMP") == "1"
STAMP2 = os.environ.get("STAMP2") == "1"
def stamp(k, i):
    if STAMP and not STAMP2:
        k(f"s_memtime s[{44+2*i}:{45+2*i}]")
def stamp2(k, i):
    if STAMP and STAMP2:
        k(f"s_memtime s[{44+2*i}:{45+2*i}]")


def wreg(jj, kk):
    R = (jj*16 + kk)*4
    if R < 256:
        return f"a[{R}:{R+3}]"
    R = 128 + R - 256
    return f"v[{R}:{R+3}]"

def wreg8(jj, c):
    R = (jj*16 + 2*c)*4
    if R < 256:
        return f"a[{R}:{R+7}]"
    R = 128 + R - 256
    return f"v[{R}:{R+7}]"

SCALE = 0x3db504f3
LOG2E = 0x3fb8aa3b
import struct as _st
SCL2E = _st.unpack("<I", _st.pack("<f", (128 ** -0.5) * 1.4426950408889634))[0]

KX_OFF = 2176
def vcomb(k):
    for r in range(4):
        k(f"v_permlane32_swap_b32 v{80+r}, v{84+r}")
    k("s_nop 0")
    for r in range(0, 4, 2):
        k(f"v_pk_add_f32 v[{80+r}:{81+r}], v[{80+r}:{81+r}], v[{84+r}:{85+r}]")
    k("v_cvt_pk_bf16_f32 v14, v80, v81\nv_cvt_pk_bf16_f32 v15, v82, v83")
def kv_flagwait(k, Ldead):
    Lw = k.newlab("kvw")
    k("v_mov_b32 v6, s35")
    k.label(Lw)
    k(f"""
    global_load_dword v7, v6, s[4:5] sc1
    s_waitcnt vmcnt(0)
    v_readfirstlane_b32 s22, v7
    s_sub_u32 s40, s40, 1
    s_cbranch_scc1 {Ldead}
    s_cmp_lt_u32 s22, 2
    s_cbranch_scc1 {Lw}
    s_add_u32 s35, s35, 128
    """)

def kv_touch(k, Ldead):
    Lo = k.newlab("tno"); Ln = k.newlab("tnf")
    k(f"""
    s_cmp_ge_u32 s13, 62
    s_cbranch_scc1 {Lo}
    s_and_b32 s22, s13, 3
    s_cmp_lg_u32 s22, 2
    s_cbranch_scc1 {Ln}
    """)
    kv_flagwait(k, Ldead)
    k.label(Ln)
    k(f"""
    s_add_u32 s22, s25, s37
    v_lshlrev_b32 v6, 2, v5            ; lane*64
    v_add_u32 v6, s22, v6
    global_load_dword v12, v6, s[4:5]
    """)
    k.label(Lo)

def kv_prefetch(k, Ldead=None):
    k(f"""
    v_add_u32 v18, s25, v5
    v_add_u32 v19, {K_F}, v18
    v_add_u32 v6, 4096, v19
    s_lshl_b32 s22, s12, 11
    v_add_u32 v18, s22, v18
    v_add_u32 v18, {V_F}, v18
    """)
    for i in range(8):
        k(f"global_load_dwordx4 v[{24+4*i}:{27+4*i}], v{19 if i < 4 else 6}, s[4:5] offset:{(i%4)*1024}")
    k("global_load_dwordx4 v[56:59], v18, s[4:5]\nglobal_load_dwordx4 v[60:63], v18, s[4:5] offset:1024")
def chain_loop(k, fast):
    st = "" if fast else " sc1"
    Lloop = k.newlab("loop"); Ldone = k.newlab("done"); Lnored = k.newlab("nored"); Ldead = k.newlab("dead")
    k.label(Lloop)
    stamp(k, 0)
    Lg = k.newlab("gpoll")
    kv_prefetch(k)
    for i in range(24):
        k(f"v_mov_b32 v{64+i}, 0")
    LgA = k.newlab("gA"); LokB = k.newlab("gokB"); Lgd = k.newlab("gdone")
    def gl(b):
        k(f"global_load_dwordx4 v[{b}:{b+3}], v4, s[20:21] sc1\nglobal_load_dwordx4 v[{b+4}:{b+7}], v4, s[20:21] offset:1024 sc1")
    def gchk(b):
        k(f"""
        s_waitcnt vmcnt(2)
        v_max3_u32 v6, v{b}, v{b+1}, v{b+2}
        v_max3_u32 v7, v{b+3}, v{b+4}, v{b+5}
        v_max3_u32 v6, v6, v{b+6}, v{b+7}
        v_max_u32 v6, v6, v7
        v_cmp_eq_u32 vcc, -1, v6
        """)
    gl(120)
    k("s_sleep 3")
    gl(8)
    k.label(Lg)
    gchk(120)
    k(f"s_cbranch_vccz {LgA}")
    gl(120)
    gchk(8)
    k(f"s_cbranch_vccz {LokB}")
    gl(8)
    k(f"""
    s_sub_u32 s40, s40, 1
    s_cbranch_scc1 {Ldead}
    s_branch {Lg}
    """)
    k.label(LokB)
    k(f"""
    ds_write_b128 v0, v[8:11]
    ds_write_b128 v0, v[12:15] offset:1040
    s_branch {Lgd}
    """)
    k.label(LgA)
    k(f"""
    ds_write_b128 v0, v[120:123]
    ds_write_b128 v0, v[124:127] offset:1040
    """)
    k.label(Lgd)
    k("s_waitcnt lgkmcnt(0)")
    TOUCH_AT = True
    stamp(k, 1)
    k("s_barrier")
    for c in range(8):
        k(f"ds_read_b128 v[{88+4*c}:{91+4*c}], v1 offset:{LDS_MX + c*128}")
    def sm(jj, c):
        d = 64 + 4*jj
        k(f"v_smfmac_f32_16x16x64_bf16 v[{d}:{d+3}], v[{88+4*c}:{91+4*c}], {wreg8(jj,c)}, v16")
    for c in range(8):
        k(f"s_waitcnt lgkmcnt({7-c})")
        for jj in range(4):
            sm(jj, c)
        if c == 3:
            k("s_waitcnt vmcnt(0)")
            kv_touch(k, Ldead)
    stamp(k, 2); stamp2(k, 0)
    vq = [(jj, c) for c in range(8) for jj in (4, 5)]
    def vs(n):
        for _ in range(n):
            if vq:
                sm(*vq.pop(0))
    vs(6)
    k(f"""
    s_lshl_b32 s22, s12, 9
    s_lshr_b32 s23, s24, 1
    s_add_u32 s23, s23, s22            ; ((s*32+h)*4 + w)*512
    v_lshrrev_b32 v19, 1, v5
    v_add_u32 v19, s23, v19
    v_add_u32 v19, {VM_F}, v19
    s_nop 1
    """)
    for r in range(4):
        k(f"v_permlane32_swap_b32 v{64+r}, v{72+r}")
        k(f"v_permlane32_swap_b32 v{68+r}, v{76+r}")
        vs(1)
    for r in range(0, 4, 2):
        k(f"v_pk_add_f32 v[{64+r}:{65+r}], v[{64+r}:{65+r}], v[{72+r}:{73+r}]")
        k(f"v_pk_add_f32 v[{68+r}:{69+r}], v[{68+r}:{69+r}], v[{76+r}:{77+r}]")
        vs(1)
    for r in range(4):
        k(f"v_cvt_pk_bf16_f32 v{6+r}, v{64+r}, v{68+r}")
        k(f"ds_write_b32 v20, v{6+r} offset:{r*272}")
        vs(1)
    vs(10)
    k("s_waitcnt lgkmcnt(0)")
    stamp2(k, 1)
    k("s_barrier")
    stamp2(k, 2)
    Llast = k.newlab("last")
    k(f"s_cmp_eq_u32 s13, 63\ns_cbranch_scc1 {Llast}")
    for w in range(4):
        k(f"ds_read_b128 v[{88+4*w}:{91+4*w}], v21 offset:{w*64}")
        k(f"ds_read_b128 v[{104+4*w}:{107+4*w}], v21 offset:{KX_OFF + w*64}")
    k("v_add_u32 v7, s38, v21\nds_read_b128 v[120:123], v7")
    stamp2(k, 3)
    for w in range(4):
        k(f"s_waitcnt lgkmcnt({7 - 2*w})")
        for t in (1, 2, 0):
            d = 64 + 4*t
            A = f"v[{104+4*w}:{107+4*w}]" if t == 0 else f"v[{24+((t-1)*4+w)*4}:{27+((t-1)*4+w)*4}]"
            c = "0" if w == 0 else f"v[{d}:{d+3}]"
            k(f"v_mfma_f32_16x16x32_bf16 v[{d}:{d+3}], {A}, v[{88+4*w}:{91+4*w}], {c}")
    vcomb(k)
    k(f"""
    global_store_dwordx2 v19, v[14:15], s[4:5] sc1
    s_lshl_b32 s22, s12, 10
    s_add_u32 s22, s22, s24
    v_add_u32 v18, s22, v5
    v_add_u32 v18, {KM_F}, v18
    s_waitcnt lgkmcnt(0)
    global_store_dwordx4 v18, v[120:123], s[4:5] sc1
    """)
    slots = [76+4*i for i in range(10)] + [24+4*i for i in range(8)]
    NS = len(slots)
    def rd(i):
        sl = slots[i % NS]
        k(f"ds_read_b128 v[{sl}:{sl+3}], v23 offset:{i*1024}")
    rd(0); rd(1); rd(2)
    nrd = 3
    for _ in range(5):
        rd(nrd); nrd += 1
    stamp2(k, 4)
    k("v_mov_b32 v7, 0xff800000")
    for i in range(4):
        k(f"v_cndmask_b32 v{64+i}, v{64+i}, v7, s[32:33]")
    k("v_max3_f32 v6, v64, v65, v66\nv_max3_f32 v8, v67, v68, v69\nv_max3_f32 v9, v70, v71, v72\nv_max3_f32 v10, v73, v74, v75")
    k("v_max_f32 v6, v6, v8\nv_max_f32 v9, v9, v10\nv_max_f32 v6, v6, v9")
    xlane_max_g(k, 6, 7, 8)
    stamp2(k, 5)
    k(f"s_mov_b32 s22, {SCL2E}\nv_mul_f32 v6, s22, v6")
    for i in range(12):
        k(f"v_fma_f32 v{64+i}, v{64+i}, s22, -v6")
    for i in range(12):
        k(f"v_exp_f32 v{64+i}, v{64+i}")
        if nrd < NS:
            rd(nrd); nrd += 1
    assert nrd == NS
    k("s_nop 0")
    k("v_pk_add_f32 v[6:7], v[64:65], v[66:67]\nv_pk_add_f32 v[8:9], v[68:69], v[70:71]\nv_pk_add_f32 v[10:11], v[72:73], v[74:75]")
    k("v_pk_add_f32 v[6:7], v[6:7], v[8:9]\nv_pk_add_f32 v[6:7], v[6:7], v[10:11]")
    k("v_add_f32 v6, v6, v7")
    xlane_sum_g(k, 6, 7, 8)
    stamp2(k, 6)
    k("v_rcp_f32 v6, v6\ns_nop 0\nv_mov_b32 v7, v6")
    for i in range(0, 12, 2):
        k(f"v_pk_mul_f32 v[{64+i}:{65+i}], v[{64+i}:{65+i}], v[6:7]")
    k("""
    v_cvt_pk_bf16_f32 v120, v64, v65
    v_cvt_pk_bf16_f32 v121, v66, v67
    v_mov_b32 v122, 0
    v_mov_b32 v123, 0
    v_mov_b32 v8, v120
    v_mov_b32 v9, v121
    """)
    for i in range(4):
        k(f"v_cvt_pk_bf16_f32 v{124+i}, v{68+2*i}, v{69+2*i}")
    k("""
    v_permlane32_swap_b32 v122, v8
    v_permlane32_swap_b32 v123, v9
    s_nop 1
    """)
    stamp(k, 3); stamp2(k, 7)
    k(f"""
    v_mfma_f32_16x16x32_bf16 v[64:67], v[56:59], v[124:127], 0
    v_mfma_f32_16x16x32_bf16 v[68:71], v[60:63], v[124:127], 0
    v_mfma_f32_16x16x16_bf16 v[64:67], v[14:15], v[120:121], v[64:67]
    v_mfma_f32_16x16x16_bf16 v[68:71], v[14:15], v[122:123], v[68:71]
    v_mov_b32 v7, s13
    v_mov_b32 v6, s36
    s_mov_b64 exec, 1
    global_store_dword v6, v7, s[4:5] sc1
    s_mov_b64 exec, -1
    s_and_b32 s22, s13, 1
    s_lshl_b32 s22, s22, 19
    s_add_u32 s22, s22, s27
    v_add_u32 v18, s22, v2
    s_nop 1
    v_cvt_pk_bf16_f32 v72, v64, v65
    v_cvt_pk_bf16_f32 v73, v66, v67
    v_cvt_pk_bf16_f32 v74, v68, v69
    v_cvt_pk_bf16_f32 v75, v70, v71
    ds_write_b64 v22, v[72:73]
    ds_write_b64 v22, v[74:75] offset:32
    """)
    pairs = [(64, 68), (120, 124), (72, 116)]
    def zero(p):
        for b in pairs[p % 3]:
            for r in range(4):
                k(f"v_mov_b32 v{b+r}, 0")
    zero(0); zero(1)
    k("s_waitcnt lgkmcnt(0)\ns_barrier")
    k("ds_read_b128 v[56:59], v17 offset:OXO\nds_read_b128 v[60:63], v17 offset:OXO2".replace("OXO2", str(LDS_OX + 128)).replace("OXO", str(LDS_OX)))
    stamp(k, 4)
    zero(2)
    k("s_waitcnt lgkmcnt(0)")
    def fin(p):
        a, b = pairs[p % 3]
        for r in range(4):
            k(f"v_permlane32_swap_b32 v{a+r}, v{b+r}")
        k("s_nop 0")
        k(f"v_pk_add_f32 v[{a}:{a+1}], v[{a}:{a+1}], v[{b}:{b+1}]")
        k(f"v_pk_add_f32 v[{a+2}:{a+3}], v[{a+2}:{a+3}], v[{b+2}:{b+3}]")
        k(f"v_min_u32 v{a}, 0xfffffffe, v{a}")
        k(f"global_store_dwordx4 v18, v[{a}:{a+3}], s[4:5]{st}")
        k("v_add_u32 v18, 32768, v18")
    for j in range(16):
        dtl, c = j >> 1, j & 1
        i = 2*j
        if i + 1 >= NS:
            issued_after = min(32, i + NS) - (i + 2)
            k(f"s_waitcnt lgkmcnt({min(issued_after,15)})")
        sl = slots[i % NS]
        d = pairs[(dtl >> 1) % 3][dtl & 1]
        k(f"v_smfmac_f32_16x16x64_bf16 v[{d}:{d+3}], v[{56+4*c}:{59+4*c}], v[{sl}:{sl+7}], v16")
        if i + NS < 32:
            rd(i + NS); rd(i + NS + 1)
        if j % 4 == 3 and j >= 7:
            p = (j >> 2) - 1
            fin(p)
            if p + 3 < 4:
                k("s_nop 1")
                zero(p + 3)
    k("s_nop 7\ns_nop 3")
    fin(3)
    stamp(k, 5)
    k(f"""
    s_add_u32 s25, s25, {32*8192}
    s_and_b32 s22, s13, 1
    s_lshl_b32 s22, s22, 19
    s_add_u32 s22, s22, s28            ; s28 = PRING + h*16384 + w*4096
    v_add_u32 v18, s22, v5
    """)
    Lp = k.newlab("redpoll"); LrA = k.newlab("rA"); LrB = k.newlab("rB")
    def rl(b):
        for i in range(4):
            k(f"global_load_dwordx4 v[{b+4*i}:{b+3+4*i}], v18, s[4:5] offset:{i*1024} sc1")
    def rchk(b):
        k(f"""
        s_waitcnt vmcnt(4)
        v_max3_u32 v7, v{b}, v{b+4}, v{b+8}
        v_max_u32 v7, v7, v{b+12}
        v_cmp_eq_u32 vcc, -1, v7
        """)
    rl(64)
    k("s_sleep 3")
    rl(80)
    k.label(Lp)
    rchk(64)
    k(f"s_cbranch_vccz {LrA}")
    rl(64)
    rchk(80)
    k(f"s_cbranch_vccz {LrB}")
    rl(80)
    k(f"""
    s_sub_u32 s40, s40, 1
    s_cbranch_scc1 {Ldead}
    s_branch {Lp}
    """)
    k.label(LrB)
    k("""
    v_pk_add_f32 v[96:97], v[80:81], v[84:85]
    v_pk_add_f32 v[98:99], v[82:83], v[86:87]
    v_pk_add_f32 v[100:101], v[88:89], v[92:93]
    v_pk_add_f32 v[102:103], v[90:91], v[94:95]
    """)
    Lrj = k.newlab("rj")
    k(f"s_branch {Lrj}")
    k.label(LrA)
    k("""
    v_pk_add_f32 v[96:97], v[64:65], v[68:69]
    v_pk_add_f32 v[98:99], v[66:67], v[70:71]
    v_pk_add_f32 v[100:101], v[72:73], v[76:77]
    v_pk_add_f32 v[102:103], v[74:75], v[78:79]
    """)
    k.label(Lrj)
    stamp(k, 6)
    k(f"""
    v_pk_add_f32 v[96:97], v[96:97], v[100:101]
    v_pk_add_f32 v[98:99], v[98:99], v[102:103]
    s_nop 1
    v_add_f32_dpp v100, v96, v96 row_ror:8 row_mask:0xf bank_mask:0xf
    v_add_f32_dpp v101, v97, v97 row_ror:8 row_mask:0xf bank_mask:0xf
    v_add_f32_dpp v102, v98, v98 row_ror:8 row_mask:0xf bank_mask:0xf
    v_add_f32_dpp v103, v99, v99 row_ror:8 row_mask:0xf bank_mask:0xf
    s_nop 1
    v_permlane16_swap_b32 v100, v102
    v_permlane16_swap_b32 v101, v103
    s_nop 0
    v_add_f32 v96, v100, v102
    v_add_f32 v97, v101, v103
    v_mov_b32 v98, v96
    v_mov_b32 v99, v97
    s_nop 1
    v_permlane32_swap_b32 v96, v98
    v_permlane32_swap_b32 v97, v99
    s_nop 0
    v_add_f32 v96, v96, v98
    v_add_f32 v97, v97, v99
    s_nop 1
    v_mov_b32_dpp v98, v96 quad_perm:[1,0,3,2] row_mask:0xf bank_mask:0xf
    v_mov_b32_dpp v99, v97 quad_perm:[1,0,3,2] row_mask:0xf bank_mask:0xf
    v_add_u32 v7, s29, v3
    v_cvt_pk_bf16_f32 v104, v96, v98
    v_cvt_pk_bf16_f32 v105, v97, v99
    v_min_u32 v104, 0xfffffffe, v104
    v_min_u32 v105, 0xfffffffe, v105
    s_mov_b32 exec_lo, 0x00550055
    s_mov_b32 exec_hi, 0
    global_store_dword v7, v104, s[4:5]{st}
    global_store_dword v7, v105, s[4:5] offset:1024{st}
    v_mov_b32 v106, -1
    v_add_u32 v7, s34, v3
    global_store_dword v7, v106, s[4:5]{st}
    global_store_dword v7, v106, s[4:5] offset:1024{st}
    s_mov_b64 exec, -1
    v_mov_b32 v108, -1
    v_mov_b32 v109, -1
    v_mov_b32 v110, -1
    v_mov_b32 v111, -1
    s_waitcnt vmcnt(4)
    """)
    for i in range(4):
        k(f"global_store_dwordx4 v18, v[108:111], s[4:5] offset:{i*1024}{st}")
    k(f"s_cmp_lg_u32 s12, 0\ns_cbranch_scc1 {Lnored}")
    if STAMP:
        stamp(k, 7)
        k("s_waitcnt lgkmcnt(0)")
        k(f"""
        s_lshl_b32 s22, s13, 6
        s_lshl_b32 s23, s10, 12
        s_add_u32 s22, s22, s23
        s_add_u32 s22, s22, {STAMPS}
        v_mov_b32 v7, s22
        """)
        for i in range(8):
            k(f"v_mov_b32 v8, s{44+2*i}\nglobal_store_dword v7, v8, s[4:5] offset:{4*i}")
    k.label(Lnored)
    k(f"""
    s_add_u32 s13, s13, 1
    s_add_u32 s24, s24, {32*4096}
    s_mov_b32 s34, s29
    s_add_u32 s20, s4, s29
    s_addc_u32 s21, s5, 0
    s_add_u32 s29, s29, 8192
    s_cmp_eq_u32 s29, {MRING + 3*8192}
    s_cselect_b32 s29, {MRING}, s29
    s_branch {Lloop}
    """)
    k.label(Llast)
    k("s_nop 7\ns_nop 3")
    vcomb(k)
    k(f"""
    v_add_u32 v7, s38, v21
    ds_read_b128 v[120:123], v7
    global_store_dwordx2 v19, v[14:15], s[4:5] sc1
    s_lshl_b32 s22, s12, 10
    s_add_u32 s22, s22, s24
    v_add_u32 v18, s22, v5
    v_add_u32 v18, {KM_F}, v18
    s_waitcnt lgkmcnt(0)
    global_store_dwordx4 v18, v[120:123], s[4:5] sc1
    v_mov_b32 v7, 64
    v_mov_b32 v6, s36
    s_waitcnt vmcnt(0)
    s_mov_b64 exec, 1
    global_store_dword v6, v7, s[4:5] sc1
    s_mov_b64 exec, -1
    """)
    if STAMP:
        k(f"""
        s_memrealtime s[44:45]
        s_waitcnt lgkmcnt(0)
        s_lshl_b32 s22, s10, 4
        s_add_u32 s22, s22, {STAMPS + 0x80000}
        v_mov_b32 v7, s22
        v_mov_b32 v8, s60
        v_mov_b32 v9, s62
        v_mov_b32 v10, s44
        v_mov_b32 v11, 0
        global_store_dwordx4 v7, v[8:11], s[4:5]
        """)
    k.label(Ldone)
    k.label(Ldead)
    k("s_endpgm")

def emit_pstore(k, d, st):
    k(f"v_min_u32 v{d}, 0xfffffffe, v{d}")
    k(f"""
    s_mov_b64 exec, s[30:31]
    global_store_dwordx4 v18, v[{d}:{d+3}], s[4:5]{st}
    s_mov_b64 exec, -1
    v_add_u32 v18, 16384, v18
    """)

def gen_chain():
    k = Kern("chain_kernel", vgpr=512, sgpr=64, accum=256)
    Lend, Lskip, Lpoll, Lgot, Lnotlast, Lslow, Lwr, Lcand, Lno, Lnoto, Lwork = [k.newlab() for _ in range(11)]
    k(f"""
    s_cmp_ge_u32 s2, 256
    s_cbranch_scc1 {Lend}
    s_load_dwordx2 s[4:5], s[0:1], {KA_WS}
    s_load_dwordx2 s[6:7], s[0:1], {KA_MEM0}
    s_load_dwordx2 s[8:9], s[0:1], {KA_DBG}
    s_memrealtime s[60:61]
    s_getreg_b32 s14, hwreg(HW_REG_XCC_ID)
    s_and_b32 s14, s14, 7
    v_lshrrev_b32 v1, 6, v0
    s_nop 0
    v_readfirstlane_b32 s12, v1
    v_mov_b32 v10, {LDS_ROLE}
    s_waitcnt lgkmcnt(0)
    s_cmp_lg_u32 s12, 0
    s_cbranch_scc1 {Lskip}
    s_mov_b64 exec, 1
    s_lshl_b32 s15, s14, 2
    v_mov_b32 v1, s15
    v_mov_b32 v2, 1
    v_mov_b32 v3, 68
    global_atomic_add v4, v1, v2, s[8:9] sc0
    global_atomic_add v5, v3, v2, s[8:9] sc0
    s_waitcnt vmcnt(0)
    v_readfirstlane_b32 s16, v4
    v_readfirstlane_b32 s17, v5
    v_mov_b32 v3, 64
    s_add_u32 s18, s14, 1
    s_cmp_lg_u32 s16, 31
    s_cbranch_scc1 {Lnotlast}
    v_mov_b32 v6, s18
    v_mov_b32 v7, 0
    global_atomic_cmpswap v3, v[6:7], s[8:9]
    s_waitcnt vmcnt(0)
    """)
    k.label(Lnotlast)
    k(f"""
    s_mov_b32 s10, -1
    s_mov_b32 s11, 0
    s_cmp_lt_u32 s16, 32
    s_cbranch_scc1 {Lcand}
    s_cmp_lt_u32 s17, 32
    s_cbranch_scc0 {Lwr}
    """)
    k.label(Lcand)
    k("s_mov_b32 s19, 0")
    k.label(Lpoll)
    k(f"""
    global_load_dword v4, v3, s[8:9] sc1
    s_waitcnt vmcnt(0)
    v_readfirstlane_b32 s15, v4
    s_cmp_lg_u32 s15, 0
    s_cbranch_scc1 {Lgot}
    s_add_u32 s19, s19, 1
    s_cmp_lt_u32 s19, 20000
    s_cbranch_scc1 {Lpoll}
    v_mov_b32 v6, 0x100
    v_mov_b32 v7, 0
    global_atomic_cmpswap v3, v[6:7], s[8:9]
    s_waitcnt vmcnt(0)
    s_mov_b32 s19, 0
    s_branch {Lpoll}
    """)
    k.label(Lgot)
    k(f"""
    s_cmp_eq_u32 s15, s18
    s_cbranch_scc0 {Lno}
    s_cmp_lt_u32 s16, 32
    s_cbranch_scc0 {Lwr}
    s_mov_b32 s10, s16
    s_mov_b32 s11, 1
    s_branch {Lwr}
    """)
    k.label(Lno)
    k(f"""
    s_cmp_eq_u32 s15, 0x100
    s_cbranch_scc0 {Lwr}
    s_cmp_lt_u32 s17, 32
    s_cbranch_scc0 {Lwr}
    s_mov_b32 s10, s17
    """)
    k.label(Lwr)
    k(f"""
    v_mov_b32 v6, s10
    v_mov_b32 v7, s11
    ds_write_b64 v10, v[6:7]
    s_mov_b64 exec, -1
    """)
    k.label(Lskip)
    k(f"""
    s_waitcnt lgkmcnt(0)
    s_barrier
    ds_read_b64 v[6:7], v10
    s_waitcnt lgkmcnt(0)
    v_readfirstlane_b32 s10, v6
    v_readfirstlane_b32 s11, v7
    s_nop 3
    s_cmp_eq_u32 s10, -1
    s_cbranch_scc1 {Lwork}
    """)
    k(f"""
    v_and_b32 v1, 63, v0
    v_lshlrev_b32 v5, 4, v1            ; lane*16
    v_bfe_u32 v6, v0, 4, 2             ; g
    v_and_b32 v7, 15, v0               ; c
    v_add_u32 v4, 4096, v5
    v_and_b32 v8, 7, v7
    v_mul_u32_u24 v9, 1040, v8
    v_lshl_add_u32 v9, v6, 5, v9
    v_lshrrev_b32 v10, 3, v7
    v_lshl_add_u32 v9, v10, 4, v9
    v_mul_u32_u24 v21, 272, v8
    v_lshl_add_u32 v21, v6, 4, v21
    s_lshl_b32 s22, s12, 6
    s_add_u32 s23, s22, {KX_OFF}
    s_mov_b32 s38, s23
    v_lshrrev_b32 v17, 3, v7
    v_add_u32 v17, v17, v6
    v_lshl_add_u32 v17, v17, 4, v21
    v_mov_b32 v16, 0x4444
    v_mov_b32 v11, 0xeeee
    v_cmp_lt_u32 vcc, 7, v7
    s_nop 1
    v_cndmask_b32 v16, v16, v11, vcc
    v_lshrrev_b32 v10, 5, v1
    v_mul_u32_u24 v20, {KX_OFF}, v10
    v_bfe_u32 v10, v1, 4, 1
    v_mul_u32_u24 v10, 1088, v10
    v_add_u32 v20, v20, v10
    v_lshl_add_u32 v20, v7, 2, v20
    v_add_u32 v20, s22, v20
    s_mov_b32 s30, 0x00ff00ff
    s_mov_b32 s31, 0x00ff00ff
    s_mov_b32 s32, 0
    s_mov_b32 s33, -1
    ; v2 = half*16384 + (g1*2 + (d>>3))*4096 + (d&7)*16
    v_lshrrev_b32 v2, 5, v1
    v_lshlrev_b32 v2, 14, v2
    v_bfe_u32 v10, v1, 3, 2            ; g1*2 + (d>>3)
    v_lshl_add_u32 v2, v10, 12, v2
    v_and_b32 v10, 7, v1
    v_lshl_add_u32 v2, v10, 4, v2
    ; v3 = (4*(w>>1) + 2*((l>>4)&1))*1024 + (16h + 8(w&1) + (l&7))*2
    v_bfe_u32 v3, v1, 4, 1
    v_lshlrev_b32 v3, 11, v3
    v_lshl_add_u32 v3, v10, 1, v3
    s_lshr_b32 s22, s12, 1
    s_lshl_b32 s22, s22, 12
    s_and_b32 s23, s12, 1
    s_lshl_b32 s23, s23, 4
    s_add_u32 s22, s22, s23
    s_lshl_b32 s23, s10, 5
    s_add_u32 s22, s22, s23
    v_add_u32 v3, s22, v3
    s_lshl_b32 s22, s12, 11
    v_add_u32 v4, s22, v5
    s_lshl_b32 s22, s10, 7
    s_lshl_b32 s23, s12, 2
    s_add_u32 s22, s22, s23
    s_add_u32 s36, s22, {FLG}
    s_mul_i32 s22, s12, 2080
    s_add_u32 s22, s22, {LDS_MX}
    v_add_u32 v0, s22, v5
    v_mov_b32 v1, v9
    s_lshl_b32 s22, s12, 6
    s_add_u32 s22, s22, {LDS_OX}
    v_and_b32 v22, 7, v7
    v_mul_u32_u24 v22, 272, v22
    v_lshl_add_u32 v22, v6, 3, v22
    v_add_u32 v22, s22, v22
    s_lshl_b32 s22, s12, 15
    s_add_u32 s22, s22, {LDS_WO}
    v_add_u32 v23, s22, v5
    ; scalars
    s_mov_b32 s13, 0
    s_lshl_b32 s24, s10, 12            ; (0*32+h)*4096
    s_lshl_b32 s25, s10, 13            ; (0*32+h)*8192
    s_lshl_b32 s27, s12, 17            ; 8w*32*512
    s_lshl_b32 s22, s10, 7
    s_add_u32 s27, s27, s22
    s_add_u32 s27, s27, {PRING}
    s_lshl_b32 s28, s10, 14
    s_lshl_b32 s22, s12, 12
    s_add_u32 s28, s28, s22
    s_add_u32 s28, s28, {PRING}
    s_mov_b32 s29, {MRING + 8192}
    s_mov_b32 s34, {MRING}
    s_mov_b32 s20, s6
    s_mov_b32 s21, s7
    s_mov_b32 s40, 0x200000
    s_mov_b32 s16, s4
    s_and_b32 s17, s5, 0xffff
    s_mov_b32 s18, 0x10000000
    s_mov_b32 s19, 0x00020000
    """)
    k(f"""
    s_lshl_b32 s22, s12, 20            ; 8w*128KB
    s_lshl_b32 s23, s10, 12
    s_add_u32 s22, s22, s23
    s_add_u32 s22, s22, {WOS_F}
    v_add_u32 v8, s22, v5
    s_lshl_b32 s23, s12, 15
    """)
    for i in range(8):
        k(f"s_add_u32 s26, s23, {i*4096 + LDS_WO}\ns_mov_b32 m0, s26\ns_mov_b32 s26, {i*131072}")
        for w in range(4):
            k(f"buffer_load_dwordx4 v8, s[16:19], s26 offen offset:{w*1024} lds")
    jl = [0, 1, 8, 9, 16, 17]
    k(f"""
    s_mul_i32 s22, s10, {24*16384}
    s_lshl_b32 s23, s12, 15            ; 2w*16KB
    s_add_u32 s22, s22, s23
    v_add_u32 v8, s22, v5
    """)
    for jj in range(6):
        for q in range(4):
            k(f"v_add_u32 v9, {WQKVS_F + jl[jj]*16384 + q*4096}, v8")
            for r in range(4):
                k(f"global_load_dwordx4 {wreg(jj, q*4+r)}, v9, s[4:5] offset:{r*1024}")
    k(f"""
    s_lshl_b32 s35, s10, 2
    s_add_u32 s35, s35, {FLG + 8192}
    s_and_b32 s22, s12, 1
    s_lshl_b32 s22, s22, 12
    s_mov_b32 s37, {K_F + 2*32*8192}
    s_mov_b32 s23, {V_F + 2*32*8192}
    s_cmp_lt_u32 s12, 2
    s_cselect_b32 s37, s37, s23
    s_add_u32 s37, s37, s22
    """)
    kv_flagwait(k, Lend)
    k(f"""
    s_waitcnt vmcnt(0)
    s_barrier
    s_memrealtime s[62:63]
    s_cmp_eq_u32 s11, 0
    s_cbranch_scc1 {Lslow}
    """)
    chain_loop(k, True)
    k.label(Lslow)
    chain_loop(k, False)
    k.label(Lend)
    k("s_endpgm")
    k.label(Lwork)
    from k_worker import worker
    worker(k)
    return k, f"grid=(256,1,1) block=(256,1,1) lds={LDS_CHAIN}"
```

```python
from common import *
WNST = 8

def gemm_setup(k):
    k(f"""
    s_load_dwordx2 s[4:5], s[0:1], {KA_WS}
    v_and_b32 v1, 63, v0
    v_lshrrev_b32 v4, 6, v0
    v_bfe_u32 v2, v0, 4, 2
    v_and_b32 v3, 15, v0
    s_nop 0
    v_readfirstlane_b32 s12, v4
    s_waitcnt lgkmcnt(0)
    s_mov_b32 s8, s4
    s_and_b32 s9, s5, 0xffff
    s_mov_b32 s10, 0x10000000
    s_mov_b32 s11, 0x00020000
    """)

def gemm_core(k, nk, opt, sA, strideA, sB, strideB, relB=None, halfB=None, tile28=False, sc='', NST=4):
    if relB is None:
        relB = [i*strideB for i in range(4)]
        halfB = 4*strideB
    relA = [i*strideA for i in range(4)]
    k(f"""
    s_and_b32 s13, s12, 1
    s_mul_i32 s14, s13, {4*strideA}
    s_add_u32 s14, s14, s{sA}
    s_mul_i32 s15, s13, {halfB}
    s_add_u32 s15, s15, s{sB}
    s_cmp_lt_u32 s12, 2
    s_cselect_b32 s14, s14, s15
    v_lshlrev_b32 v8, 4, v1            ; lane*16
    v_add_u32 v4, s14, v8
    """)
    for i in range(1, 4):
        k(f"""
        s_mov_b32 s16, {relA[i] - i*1024}
        s_mov_b32 s17, {relB[i] - i*1024}
        s_cselect_b32 s16, s16, s17
        v_add_u32 v{4+i}, s16, v4
        """)
    k(f"""
    s_lshl_b32 s17, s12, 12
    s_lshr_b32 s18, s12, 1             ; wm
    s_lshl_b32 s18, s18, 12
    v_add_u32 v9, s18, v8
    s_lshl_b32 s19, s13, 12
    v_add_u32 v10, s19, v8
    v_add_u32 v10, 8192, v10
    """)
    if tile28:
        k("""
        s_lshl_b32 s18, s12, 11
        v_add_u32 v9, s18, v8
        v_add_u32 v10, 8192, v8
        """)
    if NST > 4:
        k("v_add_u32 v11, 65536, v9\nv_add_u32 v12, 65536, v10")
    def issue(st_k):
        slot = st_k % NST
        k(f"s_add_u32 s13, s17, {slot*16384}\ns_mov_b32 m0, s13\ns_mov_b32 s13, {st_k*1024}")
        for i in range(4):
            k(f"buffer_load_dwordx4 v{4+i}, s[8:11], s13 offen offset:{i*1024}{sc} lds")
    for i in range(64):
        k(f"v_mov_b32 v{64+i}, 0")
    for st in range(min(NST-1, nk)):
        issue(st)
    opts = opt if isinstance(opt, list) else [opt]*4
    FB = [24, 128]
    def reads(kk):
        slot = kk % NST
        hi = slot >= 4
        if hi:
            slot -= 4
        va = "v11" if hi else "v9"; vb = "v12" if hi else "v10"
        fb = FB[kk % 2]
        na, nb = (2, 8) if tile28 else (4, 4)
        for a in range(na):
            k(f"ds_read_b128 v[{fb+4*a}:{fb+3+4*a}], {va} offset:{slot*16384 + a*1024}")
        for b in range(nb):
            k(f"ds_read_b128 v[{fb+4*na+4*b}:{fb+4*na+3+4*b}], {vb} offset:{slot*16384 + b*1024}")
        return na + nb
    def inflight(upto):
        return max(0, issued[0] - 1 - upto)
    issued = [min(NST-1, nk)]
    k(f"s_waitcnt vmcnt({4*inflight(0)})")
    k("s_barrier")
    nr = reads(0)
    for kk in range(nk):
        if kk + 1 < nk:
            k(f"s_waitcnt vmcnt({4*inflight(kk+1)})")
            k("s_barrier")
            if issued[0] < nk:
                issue(issued[0]); issued[0] += 1
            reads(kk+1)
            k(f"s_waitcnt lgkmcnt({nr})")
        else:
            k("s_waitcnt lgkmcnt(0)")
        fb = FB[kk % 2]
        if tile28:
            for a in range(2):
                for b in range(8):
                    d = 64 + (a*8+b)*4
                    k(f"v_mfma_f32_16x16x32_bf16 v[{d}:{d+3}], v[{fb+8+4*b}:{fb+11+4*b}], v[{fb+4*a}:{fb+3+4*a}], v[{d}:{d+3}]")
        else:
            for a in range(4):
                for b in range(4):
                    d = 64 + (a*4+b)*4
                    A = f"v[{fb+4*a}:{fb+3+4*a}]"; B = f"v[{fb+16+4*b}:{fb+19+4*b}]"
                    if opts[b] == 1:
                        k(f"v_mfma_f32_16x16x32_bf16 v[{d}:{d+3}], {A}, {B}, v[{d}:{d+3}]")
                    else:
                        k(f"v_mfma_f32_16x16x32_bf16 v[{d}:{d+3}], {B}, {A}, v[{d}:{d+3}]")
    k("s_nop 7\ns_nop 1")

def g1_body(k, Ldone):
    Lend = Ldone; Lv = k.newlab()
    k(f"""
    s_lshl_b32 s24, s20, 17
    s_add_u32 s24, s24, {XN_F}
    s_mul_i32 s25, s23, 24
    s_lshl_b32 s26, s22, 3
    s_add_u32 s25, s25, s26
    s_lshl_b32 s25, s25, 14
    s_add_u32 s25, s25, {WQKV_F}
    s_cmp_eq_u32 s22, 2
    s_cbranch_scc1 {Lv}
    """)
    gemm_core(k, 16, 2, 24, 16384, 25, 16384, NST=WNST)
    k(f"""
    s_mov_b32 s26, {Q_F}
    s_mov_b32 s27, {K_F}
    s_cmp_eq_u32 s22, 0
    s_cselect_b32 s26, s26, s27
    s_lshr_b32 s27, s12, 1             ; wm
    s_and_b32 s28, s12, 1              ; wn
    s_lshl_b32 s29, s20, 2
    s_lshl_b32 s30, s27, 1
    s_add_u32 s29, s29, s30
    s_lshl_b32 s29, s29, 5
    s_add_u32 s29, s29, s23            ; seg0*32+h
    s_lshl_b32 s29, s29, 13            ; *8KB
    s_add_u32 s26, s26, s29
    s_lshl_b32 s28, s28, 11            ; 2wn*1024
    s_add_u32 s26, s26, s28
    v_lshlrev_b32 v4, 4, v1
    v_add_u32 v4, s26, v4
    v_add_u32 v5, 4096, v4
    v_add_u32 v6, {32*8192}, v4
    v_add_u32 v7, 4096, v6
    """)
    for a in range(4):
        for p in range(2):
            d0 = 64 + (a*4+2*p)*4; d1 = d0+4
            t = 32 + 4*((a*2+p) % 4)
            k(f"""
            v_cvt_pk_bf16_f32 v{t}, v{d0}, v{d1}
            v_cvt_pk_bf16_f32 v{t+1}, v{d0+1}, v{d1+1}
            v_cvt_pk_bf16_f32 v{t+2}, v{d0+2}, v{d1+2}
            v_cvt_pk_bf16_f32 v{t+3}, v{d0+3}, v{d1+3}
            global_store_dwordx4 v{4 + a}, v[{t}:{t+3}], s[4:5] offset:{p*1024} sc1
            """)
    k(f"s_branch {Lend}")
    k.label(Lv)
    gemm_core(k, 16, 1, 24, 16384, 25, 16384, NST=WNST)
    k(f"""
    s_lshr_b32 s27, s12, 1
    s_and_b32 s28, s12, 1
    s_lshl_b32 s29, s20, 2
    s_lshl_b32 s30, s27, 1
    s_add_u32 s29, s29, s30
    s_lshl_b32 s29, s29, 5
    s_add_u32 s29, s29, s23
    s_lshl_b32 s29, s29, 13
    s_add_u32 s26, s29, {V_F}
    s_lshl_b32 s28, s28, 12            ; 4wn*1024
    s_add_u32 s26, s26, s28
    v_lshlrev_b32 v4, 4, v1
    v_add_u32 v4, s26, v4
    v_add_u32 v5, {32*8192}, v4
    """)
    for ap in range(2):
        for b in range(4):
            d0 = 64 + ((2*ap)*4+b)*4; d1 = 64 + ((2*ap+1)*4+b)*4
            t = 32 + 4*b
            k(f"""
            v_cvt_pk_bf16_f32 v{t}, v{d0}, v{d0+1}
            v_cvt_pk_bf16_f32 v{t+1}, v{d0+2}, v{d0+3}
            v_cvt_pk_bf16_f32 v{t+2}, v{d1}, v{d1+1}
            v_cvt_pk_bf16_f32 v{t+3}, v{d1+2}, v{d1+3}
            global_store_dwordx4 v{4+ap}, v[{t}:{t+3}], s[4:5] offset:{b*1024} sc1
            """)


def gen_g2():
    k = Kern("g2_kernel", vgpr=128, sgpr=40)
    Lend = k.newlab()
    k(f"s_cmp_ge_u32 s2, 256\ns_cbranch_scc1 {Lend}")
    gemm_setup(k)
    k(f"""
    s_and_b32 s20, s2, 15              ; tb
    s_bfe_u32 s21, s2, 0x20004
    s_lshr_b32 s22, s2, 6              ; ks
    s_lshl_b32 s24, s20, 20
    s_lshl_b32 s26, s22, 15
    s_add_u32 s24, s24, s26
    s_add_u32 s24, s24, {O_F}
    s_lshl_b32 s25, s21, 20
    s_add_u32 s25, s25, s26
    s_add_u32 s25, s25, {WO_F}
    """)
    g2_body(k)
    k.label(Lend)
    k("s_endpgm")
    return k, "grid=(256,1,1) block=(256,1,1) lds=65536"

def g2_body(k, sc=''):
    k(f"""
    s_lshl_b32 s24, s20, 20
    s_lshl_b32 s26, s22, 15
    s_add_u32 s24, s24, s26
    s_add_u32 s24, s24, {O_F}
    s_lshl_b32 s25, s21, 20
    s_add_u32 s25, s25, s26
    s_add_u32 s25, s25, {WO_F}
    """)
    gemm_core(k, 32, 2, 24, 131072, 25, 131072, sc=sc, NST=WNST)
    k(f"""
    s_lshr_b32 s27, s12, 1
    s_and_b32 s28, s12, 1
    s_lshl_b32 s29, s20, 7
    s_lshl_b32 s30, s27, 6
    s_add_u32 s29, s29, s30
    v_add_u32 v4, s29, v3              ; token (a=0)
    v_lshlrev_b32 v4, 11, v4
    s_lshl_b32 s30, s21, 9             ; db*128*4
    s_lshl_b32 s31, s28, 8             ; wn*64*4
    s_add_u32 s30, s30, s31
    s_lshl_b32 s31, s22, 22
    s_add_u32 s30, s30, s31
    s_add_u32 s30, s30, {PART}
    v_add_u32 v4, s30, v4
    v_lshl_add_u32 v4, v2, 4, v4       ; + g*16
    """)
    for a in range(4):
        for b in range(4):
            d = 64 + (a*4+b)*4
            k(f"global_store_dwordx4 v4, v[{d}:{d+3}], s[4:5] offset:{b*64}")
        if a < 3:
            k(f"v_add_u32 v4, {16*2048}, v4")
```

```python
from common import *

def rnd_pair(k, a, b, t):
    k(f"v_cvt_pk_bf16_f32 v{t}, v{a}, v{b}")
    k(f"v_lshlrev_b32 v{a}, 16, v{t}")
    k(f"v_and_b32 v{b}, 0xffff0000, v{t}")

def rnd1(k, a, t):
    k(f"v_cvt_pk_bf16_f32 v{t}, v{a}, v{a}")
    k(f"v_lshlrev_b32 v{a}, 16, v{t}")

def xlane_sum_g(k, x, t0, t1):
    k(f"""
    v_mov_b32 v{t0}, v{x}
    v_mov_b32 v{t1}, v{x}
    s_nop 1
    v_permlane32_swap_b32 v{t0}, v{t1}
    s_nop 1
    v_add_f32 v{x}, v{t0}, v{t1}
    v_mov_b32 v{t0}, v{x}
    v_mov_b32 v{t1}, v{x}
    s_nop 1
    v_permlane16_swap_b32 v{t0}, v{t1}
    s_nop 1
    v_add_f32 v{x}, v{t0}, v{t1}
    """)

def xlane_max_g(k, x, t0, t1):
    k(f"""
    v_mov_b32 v{t0}, v{x}
    v_mov_b32 v{t1}, v{x}
    s_nop 1
    v_permlane32_swap_b32 v{t0}, v{t1}
    s_nop 1
    v_max_f32 v{x}, v{t0}, v{t1}
    v_mov_b32 v{t0}, v{x}
    v_mov_b32 v{t1}, v{x}
    s_nop 1
    v_permlane16_swap_b32 v{t0}, v{t1}
    s_nop 1
    v_max_f32 v{x}, v{t0}, v{t1}
    """)

def gen_ln(name, src, xin_ws=None, xout_ws=None):
    k = Kern(name, vgpr=192, sgpr=32)
    Lend = k.newlab()
    k(f"""
    s_load_dwordx2 s[4:5], s[0:1], {KA_WS}
    s_load_dwordx2 s[6:7], s[0:1], {KA_X}
    s_cmp_ge_u32 s2, 128
    s_cbranch_scc1 {Lend}
    v_and_b32 v1, 15, v0           ; c
    v_bfe_u32 v2, v0, 4, 2         ; g
    v_lshrrev_b32 v3, 6, v0        ; wave
    s_lshl_b32 s8, s2, 4           ; tt*16
    v_add_u32 v4, s8, v1           ; row
    v_lshlrev_b32 v5, 10, v4       ; row*1024
    v_lshl_add_u32 v5, v3, 8, v5   ; + w*4*64
    v_lshl_add_u32 v5, v2, 4, v5   ; + g*16
    s_waitcnt lgkmcnt(0)
    """)
    if xin_ws is not None:
        k(f"s_add_u32 s6, s4, {xin_ws}\ns_addc_u32 s7, s5, 0")
    for q in range(4):
        k(f"global_load_dwordx4 v[{16+4*q}:{19+4*q}], v5, s[6:7] offset:{64*q}")
    if src == 'part':
        k(f"""
        v_lshlrev_b32 v6, 11, v4
        v_lshl_add_u32 v6, v3, 9, v6
        v_lshl_add_u32 v6, v2, 5, v6
        v_add_u32 v6, {PART}, v6
        """)
        for ks in range(4):
            base = 64 + 32*ks
            for q in range(4):
                for hh in range(2):
                    k(f"global_load_dwordx4 v[{base+8*q+4*hh}:{base+8*q+4*hh+3}], v6, s[4:5] offset:{128*q+16*hh}")
            if ks < 3:
                k(f"v_add_u32 v6, {2048*512*4}, v6")
        k("s_waitcnt vmcnt(0)")
        for i in range(0, 32, 2):
            k(f"v_pk_add_f32 v[{64+i}:{65+i}], v[{64+i}:{65+i}], v[{96+i}:{97+i}]")
            k(f"v_pk_add_f32 v[{128+i}:{129+i}], v[{128+i}:{129+i}], v[{160+i}:{161+i}]")
        for i in range(0, 32, 2):
            k(f"v_pk_add_f32 v[{64+i}:{65+i}], v[{64+i}:{65+i}], v[{128+i}:{129+i}]")
    k("s_waitcnt vmcnt(0)")
    for j in range(16):
        k(f"v_lshlrev_b32 v{32+2*j}, 16, v{16+j}")
        k(f"v_and_b32 v{33+2*j}, 0xffff0000, v{16+j}")
    if src == 'part':
        for j in range(16):
            rnd_pair(k, 64+2*j, 65+2*j, 8)
            k(f"v_add_f32 v{32+2*j}, v{32+2*j}, v{64+2*j}")
            k(f"v_add_f32 v{33+2*j}, v{33+2*j}, v{65+2*j}")
            k(f"v_cvt_pk_bf16_f32 v{16+j}, v{32+2*j}, v{33+2*j}")
            k(f"v_lshlrev_b32 v{32+2*j}, 16, v{16+j}")
            k(f"v_and_b32 v{33+2*j}, 0xffff0000, v{16+j}")
        k(f"v_add_u32 v7, {xout_ws}, v5")
        for q in range(4):
            k(f"global_store_dwordx4 v7, v[{16+4*q}:{19+4*q}], s[4:5] offset:{64*q}")
    k("v_add_f32 v8, v32, v33")
    for j in range(2, 32):
        k(f"v_add_f32 v8, v8, v{32+j}")
    xlane_sum_g(k, 8, 9, 10)
    k(f"""
    v_lshlrev_b32 v11, 2, v1
    v_lshl_add_u32 v12, v3, 6, v11     ; w*64 + c*4
    ds_write_b32 v12, v8
    s_waitcnt lgkmcnt(0)
    s_barrier
    ds_read_b32 v8, v11
    ds_read_b32 v9, v11 offset:64
    ds_read_b32 v10, v11 offset:128
    ds_read_b32 v13, v11 offset:192
    s_waitcnt lgkmcnt(0)
    v_add_f32 v8, v8, v9
    v_add_f32 v10, v10, v13
    v_add_f32 v8, v8, v10
    v_mul_f32 v8, 0x3b000000, v8
    v_mov_b32 v14, 0
    """)
    for j in range(32):
        k(f"v_sub_f32 v9, v{32+j}, v8")
        k(f"v_fmac_f32 v14, v9, v9")
    xlane_sum_g(k, 14, 9, 10)
    k(f"""
    ds_write_b32 v12, v14 offset:256
    s_waitcnt lgkmcnt(0)
    s_barrier
    ds_read_b32 v14, v11 offset:256
    ds_read_b32 v9, v11 offset:320
    ds_read_b32 v10, v11 offset:384
    ds_read_b32 v13, v11 offset:448
    s_waitcnt lgkmcnt(0)
    v_add_f32 v14, v14, v9
    v_add_f32 v10, v10, v13
    v_add_f32 v14, v14, v10
    v_mul_f32 v14, 0x3b000000, v14     ; var
    """)
    rnd_pair(k, 8, 14, 9)
    k("v_add_f32 v14, 0x3727c5ac, v14")
    rnd1(k, 14, 9)
    k("v_sqrt_f32 v14, v14\ns_nop 0")
    rnd1(k, 14, 9)
    k("v_rcp_f32 v15, v14\ns_nop 0")
    for j in range(16):
        a, b = 32+2*j, 33+2*j
        k(f"v_sub_f32 v{a}, v{a}, v8\nv_sub_f32 v{b}, v{b}, v8")
        rnd_pair(k, a, b, 9)
        for x in (a, b):
            k(f"""
            v_mul_f32 v9, v{x}, v15
            v_fma_f32 v10, -v9, v14, v{x}
            v_fma_f32 v{x}, v10, v15, v9
            """)
        k(f"v_cvt_pk_bf16_f32 v{16+j}, v{a}, v{b}")
    k(f"""
    v_and_b32 v6, 63, v0
    v_lshlrev_b32 v6, 4, v6
    v_lshl_add_u32 v6, v3, 12, v6
    s_lshl_b32 s8, s2, 14
    v_add_u32 v6, s8, v6
    v_add_u32 v6, {XN_F}, v6
    """)
    for q in range(4):
        k(f"global_store_dwordx4 v6, v[{16+4*q}:{19+4*q}], s[4:5] offset:{1024*q}")
    k.label(Lend)
    k("s_endpgm")
    return k, "grid=(128,1,1) block=(256,1,1) lds=512"
```

```python
from common import *

def transpose_store(k, dst_v):
    k("s_mov_b32 s20, 0x05040100\ns_mov_b32 s21, 0x07060302")
    for mm in range(4):
        for p in range(4):
            r0 = 16 + 4*(2*p) + mm
            r1 = 16 + 4*(2*p+1) + mm
            k(f"v_perm_b32 v{48+4*(2*mm)+p}, v{r1}, v{r0}, s20")
            k(f"v_perm_b32 v{48+4*(2*mm+1)+p}, v{r1}, v{r0}, s21")
    for m in range(8):
        k(f"global_store_dwordx4 v{dst_v}, v[{48+4*m}:{48+4*m+3}], s[4:5] offset:{m*16}")

def load_rows(k, src_s, off_v, stride, perm):
    for i in range(8):
        if perm == 'sp':
            ro = [0,1,8,9,2,3,10,11][i]
        else:
            ro = ((i & 3) + 16*(i >> 2)) if perm else i
        k(f"v_add_u32 v{8+i}, {ro*stride}, v{off_v}" if ro else f"v_mov_b32 v{8+i}, v{off_v}")
    for i in range(8):
        k(f"global_load_dwordx4 v[{16+4*i}:{16+4*i+3}], v{8+i}, s[{src_s}:{src_s+1}]")
    k("s_waitcnt vmcnt(0)")

def gen_prep():
    k = Kern("prep_kernel", vgpr=80, sgpr=32)
    k(f"""
    s_load_dwordx2 s[4:5], s[0:1], {KA_WS}
    s_load_dwordx4 s[8:11], s[0:1], {KA_WQ}
    s_load_dwordx4 s[12:15], s[0:1], {KA_WV}
    s_load_dwordx4 s[16:19], s[0:1], {KA_BWQKV}
    s_waitcnt lgkmcnt(0)
    """)
    Lwo, Lbq, Lbo, Lend, Lq, Lsp, Lso = [k.newlab() for _ in range(7)]
    k(f"""
    s_cmp_ge_u32 s2, 1104
    s_cbranch_scc1 {Lend}
    s_cmp_ge_u32 s2, 976
    s_cbranch_scc1 {Lso}
    s_cmp_ge_u32 s2, 592
    s_cbranch_scc1 {Lsp}
    s_cmp_ge_u32 s2, 576
    s_cbranch_scc1 {Lbo}
    s_cmp_ge_u32 s2, 512
    s_cbranch_scc1 {Lbq}
    s_cmp_ge_u32 s2, 384
    s_cbranch_scc1 {Lwo}
    """)
    k(f"""
    s_lshr_b32 s22, s2, 7          ; which 0..2
    s_and_b32 s23, s2, 127
    s_mov_b32 s6, s8
    s_mov_b32 s7, s9
    s_cmp_eq_u32 s22, 1
    s_cselect_b32 s6, s10, s6
    s_cselect_b32 s7, s11, s7
    s_cmp_eq_u32 s22, 2
    s_cselect_b32 s6, s12, s6
    s_cselect_b32 s7, s13, s7
    s_lshl_b32 s24, s23, 8
    v_add_u32 v1, s24, v0          ; tau
    v_and_b32 v2, 511, v1          ; octet
    v_lshrrev_b32 v3, 9, v1        ; kg
    v_lshlrev_b32 v4, 16, v3
    v_lshl_add_u32 v4, v2, 4, v4   ; + octet*16
    """)
    load_rows(k, 6, 4, 8192, False)
    k(f"""
    v_lshrrev_b32 v5, 4, v2        ; h = octet>>4
    v_mul_u32_u24 v5, 24, v5
    v_bfe_u32 v6, v2, 1, 3         ; e0>>4
    v_add_u32 v5, v5, v6
    s_lshl_b32 s25, s22, 3
    v_add_u32 v5, s25, v5          ; h*24+j
    v_lshlrev_b32 v5, 4, v5
    v_lshrrev_b32 v6, 2, v3        ; kk
    v_add_u32 v5, v5, v6
    v_lshlrev_b32 v5, 6, v5        ; *64
    v_and_b32 v6, 3, v3
    v_lshl_add_u32 v5, v6, 4, v5   ; + g*16
    v_and_b32 v6, 1, v2
    v_lshl_add_u32 v5, v6, 3, v5   ; + c0
    v_lshlrev_b32 v5, 4, v5
    """)
    if WQKV_F: k(f"v_add_u32 v5, {WQKV_F}, v5")
    transpose_store(k, 5)
    k(f"s_branch {Lend}")
    k.label(Lwo)
    k(f"""
    s_sub_u32 s23, s2, 384
    s_lshl_b32 s24, s23, 8
    v_add_u32 v1, s24, v0          ; tau
    v_and_b32 v2, 63, v1           ; octet (d)
    v_lshrrev_b32 v3, 6, v1        ; hwg
    v_lshrrev_b32 v4, 2, v3        ; h*4+w
    v_lshlrev_b32 v4, 5, v4
    v_and_b32 v6, 3, v3
    v_lshl_add_u32 v4, v6, 2, v4   ; +4g
    v_lshlrev_b32 v4, 10, v4       ; *1024 B
    v_lshl_add_u32 v4, v2, 4, v4
    """)
    load_rows(k, 14, 4, 1024, True)
    k(f"""
    v_lshrrev_b32 v5, 1, v2        ; dt
    v_lshlrev_b32 v5, 7, v5        ; dt*128
    v_lshrrev_b32 v6, 2, v3        ; h*4+w
    v_add_u32 v5, v5, v6
    v_lshlrev_b32 v5, 6, v5
    v_and_b32 v6, 3, v3
    v_lshl_add_u32 v5, v6, 4, v5
    v_and_b32 v6, 1, v2
    v_lshl_add_u32 v5, v6, 3, v5
    v_lshlrev_b32 v5, 4, v5
    v_add_u32 v5, {WO_F}, v5
    """)
    transpose_store(k, 5)
    k(f"s_branch {Lend}")
    k.label(Lbq)
    k(f"""
    s_sub_u32 s23, s2, 512         ; kg
    v_cmp_gt_u32 vcc, 192, v0
    s_and_saveexec_b64 s[26:27], vcc
    s_cbranch_execz {Lend}
    s_mul_i32 s24, s23, {8*3072}
    v_lshlrev_b32 v4, 4, v0
    v_add_u32 v4, s24, v4
    """)
    load_rows(k, 16, 4, 3072, False)
    k(f"""
    v_lshrrev_b32 v5, 1, v0        ; j
    v_lshlrev_b32 v5, 4, v5
    s_lshr_b32 s25, s23, 2
    v_add_u32 v5, s25, v5
    v_lshlrev_b32 v5, 6, v5
    s_and_b32 s25, s23, 3
    s_lshl_b32 s25, s25, 4
    v_add_u32 v5, s25, v5
    v_and_b32 v6, 1, v0
    v_lshl_add_u32 v5, v6, 3, v5
    v_lshlrev_b32 v5, 4, v5
    v_add_u32 v5, {BQKV_F}, v5
    """)
    transpose_store(k, 5)
    k(f"s_branch {Lend}")
    k.label(Lbo)
    k(f"""
    s_sub_u32 s23, s2, 576
    s_lshl_b32 s24, s23, 8
    v_add_u32 v1, s24, v0
    v_and_b32 v2, 63, v1           ; octet
    v_lshrrev_b32 v3, 6, v1        ; kg
    v_lshrrev_b32 v4, 2, v3
    v_lshlrev_b32 v4, 5, v4
    v_and_b32 v6, 3, v3
    v_lshl_add_u32 v4, v6, 2, v4
    v_lshlrev_b32 v4, 10, v4
    v_lshl_add_u32 v4, v2, 4, v4
    """)
    load_rows(k, 18, 4, 1024, True)
    k(f"""
    v_lshrrev_b32 v5, 1, v2        ; dt
    v_lshlrev_b32 v5, 4, v5
    v_lshrrev_b32 v6, 2, v3
    v_add_u32 v5, v5, v6
    v_lshlrev_b32 v5, 6, v5
    v_and_b32 v6, 3, v3
    v_lshl_add_u32 v5, v6, 4, v5
    v_and_b32 v6, 1, v2
    v_lshl_add_u32 v5, v6, 3, v5
    v_lshlrev_b32 v5, 4, v5
    v_add_u32 v5, {BWO_F}, v5
    """)
    transpose_store(k, 5)
    k(f"s_branch {Lend}")
    k.label(Lsp)
    k(f"""
    s_sub_u32 s26, s2, 592
    s_lshr_b32 s22, s26, 7
    s_and_b32 s23, s26, 127
    s_mov_b32 s6, s8
    s_mov_b32 s7, s9
    s_cmp_eq_u32 s22, 1
    s_cselect_b32 s6, s10, s6
    s_cselect_b32 s7, s11, s7
    s_cmp_eq_u32 s22, 2
    s_cselect_b32 s6, s12, s6
    s_cselect_b32 s7, s13, s7
    s_lshl_b32 s24, s23, 8
    v_add_u32 v1, s24, v0          ; tau
    v_and_b32 v2, 511, v1          ; octet
    v_lshrrev_b32 v3, 9, v1
    v_lshrrev_b32 v4, 1, v3
    v_lshlrev_b32 v4, 4, v4
    v_and_b32 v6, 1, v3
    v_lshl_add_u32 v4, v6, 2, v4
    v_lshlrev_b32 v4, 13, v4
    v_lshl_add_u32 v4, v2, 4, v4
    """)
    load_rows(k, 6, 4, 8192, 'sp')
    k(f"""
    v_lshrrev_b32 v5, 4, v2
    v_mul_u32_u24 v5, 24, v5
    v_bfe_u32 v6, v2, 1, 3
    v_add_u32 v5, v5, v6
    s_lshl_b32 s25, s22, 3
    v_add_u32 v5, s25, v5
    v_lshlrev_b32 v5, 4, v5
    v_lshrrev_b32 v6, 2, v3
    v_add_u32 v5, v5, v6
    v_lshlrev_b32 v5, 6, v5
    v_and_b32 v6, 3, v3
    v_lshl_add_u32 v5, v6, 4, v5
    v_and_b32 v6, 1, v2
    v_lshl_add_u32 v5, v6, 3, v5
    v_lshlrev_b32 v5, 4, v5
    v_add_u32 v5, {WQKVS_F}, v5
    """)
    transpose_store(k, 5)
    k(f"s_branch {Lend}")
    k.label(Lso)
    k(f"""
    s_sub_u32 s23, s2, 976
    s_lshl_b32 s24, s23, 8
    v_add_u32 v1, s24, v0          ; tau
    v_and_b32 v2, 63, v1           ; octet (d)
    v_lshrrev_b32 v3, 6, v1
    v_lshrrev_b32 v4, 1, v3
    v_lshlrev_b32 v4, 4, v4        ; 32*(h*4+kk) + 16*(g>>1)
    v_and_b32 v6, 1, v3
    v_lshl_add_u32 v4, v6, 2, v4
    v_lshlrev_b32 v4, 10, v4
    v_lshl_add_u32 v4, v2, 4, v4
    """)
    load_rows(k, 14, 4, 1024, 'sp')
    k(f"""
    v_lshrrev_b32 v5, 1, v2        ; dt
    v_lshlrev_b32 v5, 7, v5
    v_lshrrev_b32 v6, 2, v3
    v_add_u32 v5, v5, v6
    v_lshlrev_b32 v5, 6, v5
    v_and_b32 v6, 3, v3
    v_lshl_add_u32 v5, v6, 4, v5
    v_and_b32 v6, 1, v2
    v_lshl_add_u32 v5, v6, 3, v5
    v_lshlrev_b32 v5, 4, v5
    v_add_u32 v5, {WOS_F}, v5
    """)
    transpose_store(k, 5)
    k.label(Lend)
    k("s_endpgm")
    return k, "grid=(1104,1,1) block=(256,1,1) lds=0"

def gen_fill():
    k = Kern("fill_kernel", vgpr=16, sgpr=16)
    Lend = k.newlab(); Lr = k.newlab()
    k(f"""
    s_load_dwordx2 s[4:5], s[0:1], {KA_WS}
    s_cmp_ge_u32 s2, 65
    s_cbranch_scc1 {Lend}
    v_mov_b32 v4, -1
    v_mov_b32 v5, -1
    v_mov_b32 v6, -1
    v_mov_b32 v7, -1
    s_lshl_b32 s6, s2, 14
    v_lshlrev_b32 v1, 4, v0
    v_add_u32 v1, s6, v1
    v_add_u32 v1, {PRING}, v1
    s_waitcnt lgkmcnt(0)
    """)
    for i in range(4):
        k(f"global_store_dwordx4 v1, v[4:7], s[4:5]")
        k(f"v_add_u32 v1, 4096, v1")
    k(f"""
    s_cmp_eq_u32 s2, 64
    s_cbranch_scc0 {Lend}
    """)
    for i in range(2):
        k(f"global_store_dwordx4 v1, v[4:7], s[4:5]")
        k(f"v_add_u32 v1, 4096, v1")
    k(f"""
    v_mov_b32 v8, 0
    v_mov_b32 v9, 0
    v_mov_b32 v10, 0
    v_mov_b32 v11, 0
    v_lshlrev_b32 v1, 4, v0
    v_add_u32 v1, {FLG}, v1
    global_store_dwordx4 v1, v[8:11], s[4:5]
    global_store_dwordx4 v1, v[8:11], s[4:5] offset:4080
    v_add_u32 v1, 8176, v1
    global_store_dwordx4 v1, v[8:11], s[4:5]
    """)
    k.label(Lend)
    k("s_endpgm")
    assert MRING == PRING + 0x100000
    return k, "grid=(65,1,1) block=(256,1,1) lds=0"
```

```python
from common import *
from k_gemm import gemm_core, g2_body, g1_body
from k_attn import ta_body

LDS_Q = 131072 + 64

import os
STAMP = os.environ.get("STAMP") == "1"
def wst(k, i):
    if STAMP:
        k(f"s_memrealtime s[{44+2*i}:{45+2*i}]")
def wdump(k):
    if STAMP:
        wst(k, 2)
        k(f"""
        s_waitcnt lgkmcnt(0)
        s_lshl_b32 s50, s51, 4
        s_add_u32 s50, s50, {STAMPS + 0x90000}
        v_mov_b32 v190, s50
        v_mov_b32 v192, s44
        v_mov_b32 v193, s46
        v_mov_b32 v194, s48
        v_mov_b32 v195, s12
        s_cmp_eq_u32 s12, 0
        s_cbranch_scc0 WD_{k.lab}
        global_store_dwordx4 v190, v[192:195], s[4:5]
        """)
        k.label(f"WD_{k.lab}")
        k.lab += 1

def worker(k):
    Lnext, Lexit, Lt2, Lskip, Lp1, Lp2, Ls2, Ls3, Lkv, Lkvd = [k.newlab("w") for _ in range(10)]
    k(f"""
    s_mov_b32 s36, s8
    s_mov_b32 s37, s9                  ; s[36:37] = dbg
    v_and_b32 v1, 63, v0
    v_bfe_u32 v2, v0, 4, 2
    v_and_b32 v3, 15, v0
    s_mov_b32 s8, s4
    s_and_b32 s9, s5, 0xffff
    s_mov_b32 s10, 0x10000000
    s_mov_b32 s11, 0x00020000
    v_mov_b32 v200, {LDS_Q}
    """)
    k("s_mov_b32 s51, 2047")
    k.label(Lnext)
    wdump(k)
    wst(k, 0)
    k(f"""
    s_barrier
    s_cmp_lg_u32 s12, 0
    s_cbranch_scc1 {Lskip}
    s_mov_b64 exec, 1
    v_mov_b32 v6, 128
    v_mov_b32 v7, 1
    global_atomic_add v6, v6, v7, s[36:37] sc0
    s_waitcnt vmcnt(0)
    ds_write_b32 v200, v6
    s_mov_b64 exec, -1
    """)
    k.label(Lskip)
    k(f"""
    s_waitcnt lgkmcnt(0)
    s_barrier
    ds_read_b32 v6, v200
    s_waitcnt lgkmcnt(0)
    v_readfirstlane_b32 s38, v6
    s_nop 3
    s_mov_b32 s51, s38
    s_cmp_ge_u32 s38, 1792
    s_cbranch_scc1 {Lexit}
    s_cmp_lt_u32 s38, 1024
    s_cbranch_scc1 {Lkv}
    s_sub_u32 s38, s38, 1024
    s_mul_i32 s20, s38, 43691
    s_lshr_b32 s20, s20, 21            ; tb
    s_mov_b32 s41, s20
    s_mov_b32 s43, 0
    s_mul_i32 s21, s20, 48
    s_sub_u32 s39, s38, s21            ; idx
    s_cmp_ge_u32 s39, 32
    s_cbranch_scc1 {Lt2}
    s_lshl_b32 s24, s20, 17
    s_add_u32 s24, s24, {XN_F}
    s_mul_i32 s25, s39, {24*16384}
    s_add_u32 s25, s25, {WQKV_F}
    """)
    gemm_core(k, 16, 2, 24, 16384, 25, 16384, tile28=True, NST=8)
    for tq in range(2):
        for w in range(4):
            d0 = 64 + (tq*8 + 2*w)*4; d1 = d0 + 4
            t = 16 + (tq*4+w)*4
            for r in range(4):
                k(f"v_cvt_pk_bf16_f32 v{t+r}, v{d0+r}, v{d1+r}")
    k(f"""
    s_lshl_b32 s13, s20, 2
    s_add_u32 s13, s13, s12            ; seg
    s_lshl_b32 s14, s39, 7
    s_add_u32 s14, s14, {FLG}
    v_mov_b32 v6, s14
    """)
    k.label(Lp1)
    k(f"""
    global_load_dwordx4 v[8:11], v6, s[4:5] sc1
    s_waitcnt vmcnt(0)
    v_min3_u32 v8, v8, v9, v10
    v_min_u32 v8, v8, v11
    s_nop 0
    v_readfirstlane_b32 s15, v8
    s_nop 3
    s_cmp_gt_u32 s15, s13
    s_cbranch_scc1 {Ls2}
    s_add_u32 s43, s43, 1
    s_cmp_gt_u32 s43, 0x80000
    s_cbranch_scc1 {Ls2}
    s_sleep 12
    s_sub_u32 s15, s13, s15
    s_cmp_lt_u32 s15, 3
    s_cbranch_scc1 {Lp1}
    s_sleep 60
    s_branch {Lp1}
    """)
    k.label(Ls2)
    wst(k, 1)
    k(f"""
    s_lshl_b32 s13, s13, 5
    s_add_u32 s13, s13, s39            ; seg*32+h
    v_lshlrev_b32 v5, 4, v1
    """)
    ta_body(k, True)
    k(f"""
    s_waitcnt vmcnt(0)
    s_barrier
    s_cmp_lg_u32 s12, 0
    s_cbranch_scc1 {Lnext}
    s_lshl_b32 s14, s41, 2
    s_lshr_b32 s15, s39, 3
    s_add_u32 s14, s14, s15
    s_lshl_b32 s14, s14, 6
    s_add_u32 s14, s14, {FLG + 4096}
    s_mov_b64 exec, 1
    v_mov_b32 v6, s14
    v_mov_b32 v7, 1
    global_atomic_add v6, v7, s[4:5] sc1
    s_mov_b64 exec, -1
    s_branch {Lnext}
    """)
    k.label(Lt2)
    k(f"""
    s_sub_u32 s39, s39, 32
    s_and_b32 s21, s39, 3              ; db
    s_lshr_b32 s22, s39, 2             ; ks
    s_lshl_b32 s14, s20, 2
    s_add_u32 s14, s14, s22
    s_lshl_b32 s14, s14, 6
    s_add_u32 s14, s14, {FLG + 4096}
    v_mov_b32 v6, s14
    """)
    k.label(Lp2)
    k(f"""
    global_load_dword v8, v6, s[4:5] sc1
    s_waitcnt vmcnt(0)
    v_readfirstlane_b32 s15, v8
    s_nop 3
    s_cmp_ge_u32 s15, 8
    s_cbranch_scc1 {Ls3}
    s_add_u32 s43, s43, 1
    s_cmp_gt_u32 s43, 0x80000
    s_cbranch_scc1 {Ls3}
    s_sleep 8
    s_branch {Lp2}
    """)
    k.label(Ls3)
    wst(k, 1)
    k("s_barrier")
    g2_body(k, sc=" sc1")
    k(f"s_branch {Lnext}")
    k.label(Lkv)
    k(f"""
    s_lshr_b32 s20, s38, 6             ; tb
    s_and_b32 s23, s38, 31             ; h
    s_bfe_u32 s22, s38, 0x10005
    s_add_u32 s22, s22, 1              ; which
    s_lshl_b32 s41, s20, 5
    s_add_u32 s41, s41, s23
    """)
    g1_body(k, Lkvd)
    k.label(Lkvd)
    k(f"""
    s_waitcnt vmcnt(0)
    s_barrier
    s_cmp_lg_u32 s12, 0
    s_cbranch_scc1 {Lnext}
    s_lshl_b32 s14, s41, 2
    s_add_u32 s14, s14, {FLG + 8192}
    s_mov_b64 exec, 1
    v_mov_b32 v6, s14
    v_mov_b32 v7, 1
    global_atomic_add v6, v7, s[4:5] sc1
    s_mov_b64 exec, -1
    s_branch {Lnext}
    """)
    k.label(Lexit)
    k("s_endpgm")
```

```python
import sys
from common import *
from k_prep import gen_prep, gen_fill
from k_ln import gen_ln
from k_gemm import gen_g2
from k_chain import gen_chain
from k_attn import gen_ta
from k_b import gen_g3, gen_kvred, gen_b2

HDR = open("interleave_layers__memory_aug_recurrent_mem_tr__linear_attn_block__prompt.s.ref").read().split("\n")
hdr = [l for l in HDR if l.startswith(";") and "@launch" not in l and "Override" not in l and "grid=ceil" not in l]

ks = {}
def reg(kk):
    k, launch = kk
    ks[k.name] = (k, launch)
    return k.name
kprep,_ = gen_prep(); kfill,_ = gen_fill(); kln0,_ = gen_ln("ln0_kernel", 'input')
kfill2,_ = gen_fill(); kfill2.lines = [l.replace("fill_kernel", "fillb_kernel") for l in kfill2.lines]
kb2a,_ = gen_b2("b2a_kernel", X1, X2, True)
pre = reg(merge("pre_kernel", [(kln0,128),(kfill,65),(kprep,976)], 512))
ln1 = reg(gen_ln("ln1_kernel", 'part', None, X1))
ln3 = reg(gen_ln("ln3_kernel", 'part', X2, X3))
ch = reg(gen_chain())
g3 = reg(gen_g3()); kvr = reg(gen_kvred())
b2a = reg(merge("b2af_kernel", [(kb2a,128),(kfill2,65)], 17408))
b2b = reg(gen_b2("b2b_kernel", X3, None, False))
order = [pre, ch, ln1, g3, kvr, b2a, ch, ln3, g3, kvr, b2b]
if len(sys.argv) > 2:
    order = order[:int(sys.argv[2])]
out = "\n".join(hdr) + "\n"
for n in order:
    out += f"; @launch kernel={n} {ks[n][1]}\n"
out += '.amdgcn_target "amdgcn-amd-amdhsa--gfx950"\n.text\n'
for n,(k,_) in ks.items():
    out += k.text()
out += '.section .rodata,"a"\n'
for n,(k,_) in ks.items():
    out += k.desc()
open(sys.argv[1], "w").write(out)
print("written", len(out))
```

```python
from common import *
from k_ln import xlane_sum_g, xlane_max_g

LDS_SX = 0
LDS_OX = LDS_SX + 12288
LDS_ROLE = LDS_OX + 4096
LDS_MX = 17408
LDS_WO = LDS_MX + 8*1040 + 64
LDS_CHAIN = LDS_WO + 131072
import os
STAMP = os.environ.get("STAMP") == "1"
STAMP2 = os.environ.get("STAMP2") == "1"
def stamp(k, i):
    if STAMP and not STAMP2:
        k(f"s_memtime s[{44+2*i}:{45+2*i}]")
def stamp2(k, i):
    if STAMP and STAMP2:
        k(f"s_memtime s[{44+2*i}:{45+2*i}]")


def wreg(jj, kk):
    R = (jj*16 + kk)*4
    if R < 256:
        return f"a[{R}:{R+3}]"
    R = 128 + R - 256
    return f"v[{R}:{R+3}]"

def wreg8(jj, c):
    R = (jj*16 + 2*c)*4
    if R < 256:
        return f"a[{R}:{R+7}]"
    R = 128 + R - 256
    return f"v[{R}:{R+7}]"

SCALE = 0x3db504f3
LOG2E = 0x3fb8aa3b
import struct as _st
SCL2E = _st.unpack("<I", _st.pack("<f", (128 ** -0.5) * 1.4426950408889634))[0]

KX_OFF = 2176
def vcomb(k):
    for r in range(4):
        k(f"v_permlane32_swap_b32 v{80+r}, v{84+r}")
    k("s_nop 0")
    for r in range(0, 4, 2):
        k(f"v_pk_add_f32 v[{80+r}:{81+r}], v[{80+r}:{81+r}], v[{84+r}:{85+r}]")
    k("v_cvt_pk_bf16_f32 v14, v80, v81\nv_cvt_pk_bf16_f32 v15, v82, v83")
def kv_flagwait(k, Ldead):
    Lw = k.newlab("kvw")
    k("v_mov_b32 v6, s35")
    k.label(Lw)
    k(f"""
    global_load_dword v7, v6, s[4:5] sc1
    s_waitcnt vmcnt(0)
    v_readfirstlane_b32 s22, v7
    s_sub_u32 s40, s40, 1
    s_cbranch_scc1 {Ldead}
    s_cmp_lt_u32 s22, 2
    s_cbranch_scc1 {Lw}
    s_add_u32 s35, s35, 128
    """)

def kv_touch(k, Ldead):
    Lo = k.newlab("tno"); Ln = k.newlab("tnf")
    k(f"""
    s_cmp_ge_u32 s13, 62
    s_cbranch_scc1 {Lo}
    s_and_b32 s22, s13, 3
    s_cmp_lg_u32 s22, 2
    s_cbranch_scc1 {Ln}
    """)
    kv_flagwait(k, Ldead)
    k.label(Ln)
    k(f"""
    s_add_u32 s22, s25, s37
    v_lshlrev_b32 v6, 2, v5            ; lane*64
    v_add_u32 v6, s22, v6
    global_load_dword v12, v6, s[4:5]
    """)
    k.label(Lo)

def kv_prefetch(k, Ldead=None):
    k(f"""
    v_add_u32 v18, s25, v5
    v_add_u32 v19, {K_F}, v18
    v_add_u32 v6, 4096, v19
    s_lshl_b32 s22, s12, 11
    v_add_u32 v18, s22, v18
    v_add_u32 v18, {V_F}, v18
    """)
    for i in range(8):
        k(f"global_load_dwordx4 v[{24+4*i}:{27+4*i}], v{19 if i < 4 else 6}, s[4:5] offset:{(i%4)*1024}")
    k("global_load_dwordx4 v[56:59], v18, s[4:5]\nglobal_load_dwordx4 v[60:63], v18, s[4:5] offset:1024")
def chain_loop(k, fast):
    st = "" if fast else " sc1"
    Lloop = k.newlab("loop"); Ldone = k.newlab("done"); Lnored = k.newlab("nored"); Ldead = k.newlab("dead")
    k.label(Lloop)
    stamp(k, 0)
    Lg = k.newlab("gpoll")
    kv_prefetch(k)
    for i in range(24):
        k(f"v_mov_b32 v{64+i}, 0")
    LgA = k.newlab("gA"); LokB = k.newlab("gokB"); Lgd = k.newlab("gdone")
    def gl(b):
        k(f"global_load_dwordx4 v[{b}:{b+3}], v4, s[20:21] sc1\nglobal_load_dwordx4 v[{b+4}:{b+7}], v4, s[20:21] offset:1024 sc1")
    def gchk(b):
        k(f"""
        s_waitcnt vmcnt(2)
        v_max3_u32 v6, v{b}, v{b+1}, v{b+2}
        v_max3_u32 v7, v{b+3}, v{b+4}, v{b+5}
        v_max3_u32 v6, v6, v{b+6}, v{b+7}
        v_max_u32 v6, v6, v7
        v_cmp_eq_u32 vcc, -1, v6
        """)
    gl(120)
    k("s_sleep 3")
    gl(8)
    k.label(Lg)
    gchk(120)
    k(f"s_cbranch_vccz {LgA}")
    gl(120)
    gchk(8)
    k(f"s_cbranch_vccz {LokB}")
    gl(8)
    k(f"""
    s_sub_u32 s40, s40, 1
    s_cbranch_scc1 {Ldead}
    s_branch {Lg}
    """)
    k.label(LokB)
    k(f"""
    ds_write_b128 v0, v[8:11]
    ds_write_b128 v0, v[12:15] offset:1040
    s_branch {Lgd}
    """)
    k.label(LgA)
    k(f"""
    ds_write_b128 v0, v[120:123]
    ds_write_b128 v0, v[124:127] offset:1040
    """)
    k.label(Lgd)
    k("s_waitcnt lgkmcnt(0)")
    TOUCH_AT = True
    stamp(k, 1)
    k("s_barrier")
    for c in range(8):
        k(f"ds_read_b128 v[{88+4*c}:{91+4*c}], v1 offset:{LDS_MX + c*128}")
    def sm(jj, c):
        d = 64 + 4*jj
        k(f"v_smfmac_f32_16x16x64_bf16 v[{d}:{d+3}], v[{88+4*c}:{91+4*c}], {wreg8(jj,c)}, v16")
    for c in range(8):
        k(f"s_waitcnt lgkmcnt({7-c})")
        for jj in range(4):
            sm(jj, c)
        if c == 3:
            k("s_waitcnt vmcnt(0)")
            kv_touch(k, Ldead)
    stamp(k, 2); stamp2(k, 0)
    vq = [(jj, c) for c in range(8) for jj in (4, 5)]
    def vs(n):
        for _ in range(n):
            if vq:
                sm(*vq.pop(0))
    vs(6)
    k(f"""
    s_lshl_b32 s22, s12, 9
    s_lshr_b32 s23, s24, 1
    s_add_u32 s23, s23, s22            ; ((s*32+h)*4 + w)*512
    v_lshrrev_b32 v19, 1, v5
    v_add_u32 v19, s23, v19
    v_add_u32 v19, {VM_F}, v19
    s_nop 1
    """)
    for r in range(4):
        k(f"v_permlane32_swap_b32 v{64+r}, v{72+r}")
        k(f"v_permlane32_swap_b32 v{68+r}, v{76+r}")
        vs(1)
    for r in range(0, 4, 2):
        k(f"v_pk_add_f32 v[{64+r}:{65+r}], v[{64+r}:{65+r}], v[{72+r}:{73+r}]")
        k(f"v_pk_add_f32 v[{68+r}:{69+r}], v[{68+r}:{69+r}], v[{76+r}:{77+r}]")
        vs(1)
    for r in range(4):
        k(f"v_cvt_pk_bf16_f32 v{6+r}, v{64+r}, v{68+r}")
        k(f"ds_write_b32 v20, v{6+r} offset:{r*272}")
        vs(1)
    vs(10)
    k("s_waitcnt lgkmcnt(0)")
    stamp2(k, 1)
    k("s_barrier")
    stamp2(k, 2)
    Llast = k.newlab("last")
    k(f"s_cmp_eq_u32 s13, 63\ns_cbranch_scc1 {Llast}")
    for w in range(4):
        k(f"ds_read_b128 v[{88+4*w}:{91+4*w}], v21 offset:{w*64}")
        k(f"ds_read_b128 v[{104+4*w}:{107+4*w}], v21 offset:{KX_OFF + w*64}")
    k("ds_read_b128 v[120:123], v17")
    stamp2(k, 3)
    for w in range(4):
        k(f"s_waitcnt lgkmcnt({7 - 2*w})")
        for t in (1, 2, 0):
            d = 64 + 4*t
            A = f"v[{104+4*w}:{107+4*w}]" if t == 0 else f"v[{24+((t-1)*4+w)*4}:{27+((t-1)*4+w)*4}]"
            c = "0" if w == 0 else f"v[{d}:{d+3}]"
            k(f"v_mfma_f32_16x16x32_bf16 v[{d}:{d+3}], {A}, v[{88+4*w}:{91+4*w}], {c}")
    vcomb(k)
    k(f"""
    global_store_dwordx2 v19, v[14:15], s[4:5] sc1
    s_lshl_b32 s22, s12, 10
    s_add_u32 s22, s22, s24
    v_add_u32 v18, s22, v5
    v_add_u32 v18, {KM_F}, v18
    s_waitcnt lgkmcnt(0)
    global_store_dwordx4 v18, v[120:123], s[4:5] sc1
    """)
    slots = [76+4*i for i in range(11)] + [24+4*i for i in range(8)]
    NS = len(slots)
    def rd(i):
        sl = slots[i % NS]
        k(f"ds_read_b128 v[{sl}:{sl+3}], v23 offset:{i*1024}")
    rd(0); rd(1); rd(2)
    nrd = 3
    for _ in range(5):
        rd(nrd); nrd += 1
    stamp2(k, 4)
    k("v_mov_b32 v7, 0xff800000")
    for i in range(4):
        k(f"v_cndmask_b32 v{64+i}, v{64+i}, v7, s[32:33]")
    k("v_max3_f32 v6, v64, v65, v66\nv_max3_f32 v8, v67, v68, v69\nv_max3_f32 v9, v70, v71, v72\nv_max3_f32 v10, v73, v74, v75")
    k("v_max_f32 v6, v6, v8\nv_max_f32 v9, v9, v10\nv_max_f32 v6, v6, v9")
    xlane_max_g(k, 6, 7, 8)
    stamp2(k, 5)
    k(f"s_mov_b32 s22, {SCL2E}\nv_mul_f32 v6, s22, v6")
    for i in range(12):
        k(f"v_fma_f32 v{64+i}, v{64+i}, s22, -v6")
    for i in range(12):
        k(f"v_exp_f32 v{64+i}, v{64+i}")
        if nrd < NS:
            rd(nrd); nrd += 1
    assert nrd == NS
    k("s_nop 0")
    k("v_pk_add_f32 v[6:7], v[64:65], v[66:67]\nv_pk_add_f32 v[8:9], v[68:69], v[70:71]\nv_pk_add_f32 v[10:11], v[72:73], v[74:75]")
    k("v_pk_add_f32 v[6:7], v[6:7], v[8:9]\nv_pk_add_f32 v[6:7], v[6:7], v[10:11]")
    k("v_add_f32 v6, v6, v7")
    xlane_sum_g(k, 6, 7, 8)
    stamp2(k, 6)
    k("v_rcp_f32 v6, v6\ns_nop 0\nv_mov_b32 v7, v6")
    for i in range(0, 12, 2):
        k(f"v_pk_mul_f32 v[{64+i}:{65+i}], v[{64+i}:{65+i}], v[6:7]")
    k("""
    v_cvt_pk_bf16_f32 v120, v64, v65
    v_cvt_pk_bf16_f32 v121, v66, v67
    v_mov_b32 v122, 0
    v_mov_b32 v123, 0
    v_mov_b32 v8, v120
    v_mov_b32 v9, v121
    """)
    for i in range(4):
        k(f"v_cvt_pk_bf16_f32 v{124+i}, v{68+2*i}, v{69+2*i}")
    k("""
    v_permlane32_swap_b32 v122, v8
    v_permlane32_swap_b32 v123, v9
    s_nop 1
    """)
    stamp(k, 3); stamp2(k, 7)
    k(f"""
    v_mfma_f32_16x16x32_bf16 v[64:67], v[56:59], v[124:127], 0
    v_mfma_f32_16x16x32_bf16 v[68:71], v[60:63], v[124:127], 0
    v_mfma_f32_16x16x16_bf16 v[64:67], v[14:15], v[120:121], v[64:67]
    v_mfma_f32_16x16x16_bf16 v[68:71], v[14:15], v[122:123], v[68:71]
    v_mov_b32 v7, s13
    v_mov_b32 v6, s36
    s_mov_b64 exec, 1
    global_store_dword v6, v7, s[4:5] sc1
    s_mov_b64 exec, -1
    s_and_b32 s22, s13, 1
    s_lshl_b32 s22, s22, 19
    s_add_u32 s22, s22, s27
    v_add_u32 v18, s22, v2
    s_nop 4
    v_cvt_pk_bf16_f32 v72, v64, v65
    v_cvt_pk_bf16_f32 v73, v66, v67
    v_cvt_pk_bf16_f32 v74, v68, v69
    v_cvt_pk_bf16_f32 v75, v70, v71
    ds_write_b128 v22, v[72:75]
    s_waitcnt lgkmcnt(0)
    s_barrier
    """)
    for w in range(4):
        k(f"ds_read_b128 v[{56+4*w}:{59+4*w}], v5 offset:{LDS_OX + w*1024}")
    stamp(k, 4)
    accs = [8, 120, 124, 72]
    k("s_waitcnt lgkmcnt(0)")
    pend = 0
    for i in range(32):
        dtl, w = i // 4, i % 4
        if i >= NS:
            issued_after = min(32, i + NS) - (i + 1)
            k(f"s_waitcnt lgkmcnt({min(issued_after,15)})")
        sl = slots[i % NS]; d = accs[dtl % 4]
        c = "0" if w == 0 else f"v[{d}:{d+3}]"
        k(f"v_mfma_f32_16x16x32_bf16 v[{d}:{d+3}], v[{sl}:{sl+3}], v[{56+4*w}:{59+4*w}], {c}")
        if i + NS < 32:
            rd(i + NS)
        if w == 3 and dtl >= 1:
            emit_pstore(k, accs[(dtl-1) % 4], st)
    k("s_nop 7")
    emit_pstore(k, accs[3], st)
    stamp(k, 5)
    k(f"""
    s_add_u32 s25, s25, {32*8192}
    s_and_b32 s22, s13, 1
    s_lshl_b32 s22, s22, 19
    s_add_u32 s22, s22, s28            ; s28 = PRING + h*16384 + w*4096
    v_add_u32 v18, s22, v5
    """)
    Lp = k.newlab("redpoll"); LrA = k.newlab("rA"); LrB = k.newlab("rB")
    def rl(b):
        for i in range(4):
            k(f"global_load_dwordx4 v[{b+4*i}:{b+3+4*i}], v18, s[4:5] offset:{i*1024} sc1")
    def rchk(b):
        k(f"""
        s_waitcnt vmcnt(4)
        v_max3_u32 v7, v{b}, v{b+4}, v{b+8}
        v_max_u32 v7, v7, v{b+12}
        v_cmp_eq_u32 vcc, -1, v7
        """)
    rl(64)
    k("s_sleep 3")
    rl(80)
    k.label(Lp)
    rchk(64)
    k(f"s_cbranch_vccz {LrA}")
    rl(64)
    rchk(80)
    k(f"s_cbranch_vccz {LrB}")
    rl(80)
    k(f"""
    s_sub_u32 s40, s40, 1
    s_cbranch_scc1 {Ldead}
    s_branch {Lp}
    """)
    k.label(LrB)
    k("""
    v_pk_add_f32 v[96:97], v[80:81], v[84:85]
    v_pk_add_f32 v[98:99], v[82:83], v[86:87]
    v_pk_add_f32 v[100:101], v[88:89], v[92:93]
    v_pk_add_f32 v[102:103], v[90:91], v[94:95]
    """)
    Lrj = k.newlab("rj")
    k(f"s_branch {Lrj}")
    k.label(LrA)
    k("""
    v_pk_add_f32 v[96:97], v[64:65], v[68:69]
    v_pk_add_f32 v[98:99], v[66:67], v[70:71]
    v_pk_add_f32 v[100:101], v[72:73], v[76:77]
    v_pk_add_f32 v[102:103], v[74:75], v[78:79]
    """)
    k.label(Lrj)
    stamp(k, 6)
    k(f"""
    v_pk_add_f32 v[96:97], v[96:97], v[100:101]
    v_pk_add_f32 v[98:99], v[98:99], v[102:103]
    s_nop 1
    v_add_f32_dpp v100, v96, v96 row_ror:8 row_mask:0xf bank_mask:0xf
    v_add_f32_dpp v101, v97, v97 row_ror:8 row_mask:0xf bank_mask:0xf
    v_add_f32_dpp v102, v98, v98 row_ror:8 row_mask:0xf bank_mask:0xf
    v_add_f32_dpp v103, v99, v99 row_ror:8 row_mask:0xf bank_mask:0xf
    s_nop 1
    v_permlane16_swap_b32 v100, v102
    v_permlane16_swap_b32 v101, v103
    s_nop 0
    v_add_f32 v96, v100, v102
    v_add_f32 v97, v101, v103
    v_mov_b32 v98, v96
    v_mov_b32 v99, v97
    s_nop 1
    v_permlane32_swap_b32 v96, v98
    v_permlane32_swap_b32 v97, v99
    s_nop 0
    v_add_f32 v96, v96, v98
    v_add_f32 v97, v97, v99
    v_cvt_pk_bf16_f32 v104, v96, v97
    v_min_u32 v104, 0xfffffffe, v104
    v_add_u32 v7, s29, v3
    s_mov_b32 exec_lo, 0x00ff00ff
    s_mov_b32 exec_hi, 0
    global_store_dword v7, v104, s[4:5]{st}
    v_mov_b32 v106, -1
    v_add_u32 v7, s34, v3
    global_store_dword v7, v106, s[4:5]{st}
    s_mov_b64 exec, -1
    v_mov_b32 v108, -1
    v_mov_b32 v109, -1
    v_mov_b32 v110, -1
    v_mov_b32 v111, -1
    s_waitcnt vmcnt(2)
    """)
    for i in range(4):
        k(f"global_store_dwordx4 v18, v[108:111], s[4:5] offset:{i*1024}{st}")
    k(f"s_cmp_lg_u32 s12, 0\ns_cbranch_scc1 {Lnored}")
    if STAMP:
        stamp(k, 7)
        k("s_waitcnt lgkmcnt(0)")
        k(f"""
        s_lshl_b32 s22, s13, 6
        s_lshl_b32 s23, s10, 12
        s_add_u32 s22, s22, s23
        s_add_u32 s22, s22, {STAMPS}
        v_mov_b32 v7, s22
        """)
        for i in range(8):
            k(f"v_mov_b32 v8, s{44+2*i}\nglobal_store_dword v7, v8, s[4:5] offset:{4*i}")
    k.label(Lnored)
    k(f"""
    s_add_u32 s13, s13, 1
    s_add_u32 s24, s24, {32*4096}
    s_mov_b32 s34, s29
    s_add_u32 s20, s4, s29
    s_addc_u32 s21, s5, 0
    s_add_u32 s29, s29, 8192
    s_cmp_eq_u32 s29, {MRING + 3*8192}
    s_cselect_b32 s29, {MRING}, s29
    s_branch {Lloop}
    """)
    k.label(Llast)
    k("s_nop 7\ns_nop 3")
    vcomb(k)
    k(f"""
    ds_read_b128 v[120:123], v17
    global_store_dwordx2 v19, v[14:15], s[4:5] sc1
    s_lshl_b32 s22, s12, 10
    s_add_u32 s22, s22, s24
    v_add_u32 v18, s22, v5
    v_add_u32 v18, {KM_F}, v18
    s_waitcnt lgkmcnt(0)
    global_store_dwordx4 v18, v[120:123], s[4:5] sc1
    v_mov_b32 v7, 64
    v_mov_b32 v6, s36
    s_waitcnt vmcnt(0)
    s_mov_b64 exec, 1
    global_store_dword v6, v7, s[4:5] sc1
    s_mov_b64 exec, -1
    """)
    if STAMP:
        k(f"""
        s_memrealtime s[44:45]
        s_waitcnt lgkmcnt(0)
        s_lshl_b32 s22, s10, 4
        s_add_u32 s22, s22, {STAMPS + 0x80000}
        v_mov_b32 v7, s22
        v_mov_b32 v8, s60
        v_mov_b32 v9, s62
        v_mov_b32 v10, s44
        v_mov_b32 v11, 0
        global_store_dwordx4 v7, v[8:11], s[4:5]
        """)
    k.label(Ldone)
    k.label(Ldead)
    k("s_endpgm")

def emit_pstore(k, d, st):
    k(f"v_min_u32 v{d}, 0xfffffffe, v{d}")
    k(f"""
    s_mov_b64 exec, s[30:31]
    global_store_dwordx4 v18, v[{d}:{d+3}], s[4:5]{st}
    s_mov_b64 exec, -1
    v_add_u32 v18, 16384, v18
    """)

def gen_chain():
    k = Kern("chain_kernel", vgpr=512, sgpr=64, accum=256)
    Lend, Lskip, Lpoll, Lgot, Lnotlast, Lslow, Lwr, Lcand, Lno, Lnoto, Lwork = [k.newlab() for _ in range(11)]
    k(f"""
    s_cmp_ge_u32 s2, 256
    s_cbranch_scc1 {Lend}
    s_load_dwordx2 s[4:5], s[0:1], {KA_WS}
    s_load_dwordx2 s[6:7], s[0:1], {KA_MEM0}
    s_load_dwordx2 s[8:9], s[0:1], {KA_DBG}
    s_memrealtime s[60:61]
    s_getreg_b32 s14, hwreg(HW_REG_XCC_ID)
    s_and_b32 s14, s14, 7
    v_lshrrev_b32 v1, 6, v0
    s_nop 0
    v_readfirstlane_b32 s12, v1
    v_mov_b32 v10, {LDS_ROLE}
    s_waitcnt lgkmcnt(0)
    s_cmp_lg_u32 s12, 0
    s_cbranch_scc1 {Lskip}
    s_mov_b64 exec, 1
    s_lshl_b32 s15, s14, 2
    v_mov_b32 v1, s15
    v_mov_b32 v2, 1
    v_mov_b32 v3, 68
    global_atomic_add v4, v1, v2, s[8:9] sc0
    global_atomic_add v5, v3, v2, s[8:9] sc0
    s_waitcnt vmcnt(0)
    v_readfirstlane_b32 s16, v4
    v_readfirstlane_b32 s17, v5
    v_mov_b32 v3, 64
    s_add_u32 s18, s14, 1
    s_cmp_lg_u32 s16, 31
    s_cbranch_scc1 {Lnotlast}
    v_mov_b32 v6, s18
    v_mov_b32 v7, 0
    global_atomic_cmpswap v3, v[6:7], s[8:9]
    s_waitcnt vmcnt(0)
    """)
    k.label(Lnotlast)
    k(f"""
    s_mov_b32 s10, -1
    s_mov_b32 s11, 0
    s_cmp_lt_u32 s16, 32
    s_cbranch_scc1 {Lcand}
    s_cmp_lt_u32 s17, 32
    s_cbranch_scc0 {Lwr}
    """)
    k.label(Lcand)
    k("s_mov_b32 s19, 0")
    k.label(Lpoll)
    k(f"""
    global_load_dword v4, v3, s[8:9] sc1
    s_waitcnt vmcnt(0)
    v_readfirstlane_b32 s15, v4
    s_cmp_lg_u32 s15, 0
    s_cbranch_scc1 {Lgot}
    s_add_u32 s19, s19, 1
    s_cmp_lt_u32 s19, 20000
    s_cbranch_scc1 {Lpoll}
    v_mov_b32 v6, 0x100
    v_mov_b32 v7, 0
    global_atomic_cmpswap v3, v[6:7], s[8:9]
    s_waitcnt vmcnt(0)
    s_mov_b32 s19, 0
    s_branch {Lpoll}
    """)
    k.label(Lgot)
    k(f"""
    s_cmp_eq_u32 s15, s18
    s_cbranch_scc0 {Lno}
    s_cmp_lt_u32 s16, 32
    s_cbranch_scc0 {Lwr}
    s_mov_b32 s10, s16
    s_mov_b32 s11, 1
    s_branch {Lwr}
    """)
    k.label(Lno)
    k(f"""
    s_cmp_eq_u32 s15, 0x100
    s_cbranch_scc0 {Lwr}
    s_cmp_lt_u32 s17, 32
    s_cbranch_scc0 {Lwr}
    s_mov_b32 s10, s17
    """)
    k.label(Lwr)
    k(f"""
    v_mov_b32 v6, s10
    v_mov_b32 v7, s11
    ds_write_b64 v10, v[6:7]
    s_mov_b64 exec, -1
    """)
    k.label(Lskip)
    k(f"""
    s_waitcnt lgkmcnt(0)
    s_barrier
    ds_read_b64 v[6:7], v10
    s_waitcnt lgkmcnt(0)
    v_readfirstlane_b32 s10, v6
    v_readfirstlane_b32 s11, v7
    s_nop 3
    s_cmp_eq_u32 s10, -1
    s_cbranch_scc1 {Lwork}
    """)
    k(f"""
    v_and_b32 v1, 63, v0
    v_lshlrev_b32 v5, 4, v1            ; lane*16
    v_bfe_u32 v6, v0, 4, 2             ; g
    v_and_b32 v7, 15, v0               ; c
    v_add_u32 v4, 4096, v5
    v_and_b32 v8, 7, v7
    v_mul_u32_u24 v9, 1040, v8
    v_lshl_add_u32 v9, v6, 5, v9
    v_lshrrev_b32 v10, 3, v7
    v_lshl_add_u32 v9, v10, 4, v9
    v_mul_u32_u24 v21, 272, v8
    v_lshl_add_u32 v21, v6, 4, v21
    s_lshl_b32 s22, s12, 6
    s_add_u32 s23, s22, {KX_OFF}
    v_add_u32 v17, s23, v21
    v_mov_b32 v16, 0x4444
    v_mov_b32 v11, 0xeeee
    v_cmp_lt_u32 vcc, 7, v7
    s_nop 1
    v_cndmask_b32 v16, v16, v11, vcc
    v_lshrrev_b32 v10, 5, v1
    v_mul_u32_u24 v20, {KX_OFF}, v10
    v_bfe_u32 v10, v1, 4, 1
    v_mul_u32_u24 v10, 1088, v10
    v_add_u32 v20, v20, v10
    v_lshl_add_u32 v20, v7, 2, v20
    v_add_u32 v20, s22, v20
    s_mov_b32 s30, 0x00ff00ff
    s_mov_b32 s31, 0x00ff00ff
    s_mov_b32 s32, 0
    s_mov_b32 s33, -1
    v_and_b32 v2, 1, v7
    v_lshlrev_b32 v2, 2, v2
    v_add_u32 v2, v2, v6
    v_lshlrev_b32 v2, 4, v2
    v_bfe_u32 v10, v7, 1, 2
    v_lshl_add_u32 v2, v10, 12, v2
    v_bfe_u32 v3, v1, 2, 1
    s_lshl_b32 s22, s12, 1
    v_add_u32 v3, s22, v3
    v_lshlrev_b32 v3, 10, v3
    v_and_b32 v8, 3, v1
    v_lshl_add_u32 v3, v8, 3, v3
    v_bfe_u32 v8, v1, 4, 1
    v_lshl_add_u32 v3, v8, 2, v3
    s_lshl_b32 s22, s10, 5
    v_add_u32 v3, s22, v3
    s_lshl_b32 s22, s12, 11
    v_add_u32 v4, s22, v5
    s_lshl_b32 s22, s10, 7
    s_lshl_b32 s23, s12, 2
    s_add_u32 s22, s22, s23
    s_add_u32 s36, s22, {FLG}
    s_mul_i32 s22, s12, 2080
    s_add_u32 s22, s22, {LDS_MX}
    v_add_u32 v0, s22, v5
    v_mov_b32 v1, v9
    s_lshl_b32 s22, s12, 10
    s_add_u32 s22, s22, {LDS_OX}
    v_add_u32 v22, s22, v5
    s_lshl_b32 s22, s12, 15
    s_add_u32 s22, s22, {LDS_WO}
    v_add_u32 v23, s22, v5
    ; scalars
    s_mov_b32 s13, 0
    s_lshl_b32 s24, s10, 12            ; (0*32+h)*4096
    s_lshl_b32 s25, s10, 13            ; (0*32+h)*8192
    s_lshl_b32 s27, s12, 17            ; 8w*32*512
    s_lshl_b32 s22, s10, 7
    s_add_u32 s27, s27, s22
    s_add_u32 s27, s27, {PRING}
    s_lshl_b32 s28, s10, 14
    s_lshl_b32 s22, s12, 12
    s_add_u32 s28, s28, s22
    s_add_u32 s28, s28, {PRING}
    s_mov_b32 s29, {MRING + 8192}
    s_mov_b32 s34, {MRING}
    s_mov_b32 s20, s6
    s_mov_b32 s21, s7
    s_mov_b32 s40, 0x200000
    s_mov_b32 s16, s4
    s_and_b32 s17, s5, 0xffff
    s_mov_b32 s18, 0x10000000
    s_mov_b32 s19, 0x00020000
    """)
    k(f"""
    s_lshl_b32 s22, s12, 20            ; 8w*128KB
    s_lshl_b32 s23, s10, 12
    s_add_u32 s22, s22, s23
    s_add_u32 s22, s22, {WO_F}
    v_add_u32 v8, s22, v5
    s_lshl_b32 s23, s12, 15
    """)
    for i in range(8):
        k(f"s_add_u32 s26, s23, {i*4096 + LDS_WO}\ns_mov_b32 m0, s26\ns_mov_b32 s26, {i*131072}")
        for w in range(4):
            k(f"buffer_load_dwordx4 v8, s[16:19], s26 offen offset:{w*1024} lds")
    jl = [0, 1, 8, 9, 16, 17]
    k(f"""
    s_mul_i32 s22, s10, {24*16384}
    s_lshl_b32 s23, s12, 15            ; 2w*16KB
    s_add_u32 s22, s22, s23
    v_add_u32 v8, s22, v5
    """)
    for jj in range(6):
        for q in range(4):
            k(f"v_add_u32 v9, {WQKVS_F + jl[jj]*16384 + q*4096}, v8")
            for r in range(4):
                k(f"global_load_dwordx4 {wreg(jj, q*4+r)}, v9, s[4:5] offset:{r*1024}")
    k(f"""
    s_lshl_b32 s35, s10, 2
    s_add_u32 s35, s35, {FLG + 8192}
    s_and_b32 s22, s12, 1
    s_lshl_b32 s22, s22, 12
    s_mov_b32 s37, {K_F + 2*32*8192}
    s_mov_b32 s23, {V_F + 2*32*8192}
    s_cmp_lt_u32 s12, 2
    s_cselect_b32 s37, s37, s23
    s_add_u32 s37, s37, s22
    """)
    kv_flagwait(k, Lend)
    k(f"""
    s_waitcnt vmcnt(0)
    s_barrier
    s_memrealtime s[62:63]
    s_cmp_eq_u32 s11, 0
    s_cbranch_scc1 {Lslow}
    """)
    chain_loop(k, True)
    k.label(Lslow)
    chain_loop(k, False)
    k.label(Lend)
    k("s_endpgm")
    k.label(Lwork)
    from k_worker import worker
    worker(k)
    return k, f"grid=(256,1,1) block=(256,1,1) lds={LDS_CHAIN}"
```
